```python
import torch

def _softmax(x, axis=-1):
    return torch.softmax(x, dim=axis)
def _gelu(x):
    return torch.nn.functional.gelu(x, approximate="tanh")
def _silu(x):
    return torch.nn.functional.silu(x)
def _sigmoid(x):
    return torch.sigmoid(x)
def _layernorm(x, axis=-1, eps=1e-5):
    m = x.mean(dim=axis, keepdim=True)
    v = x.var(dim=axis, keepdim=True, unbiased=False)
    return (x - m) / torch.sqrt(v + eps)
def _scatter_add(tgt, idx, src, axis=0):
    return tgt.clone().index_add_(axis, idx, src)
def _segment_sum(src, seg, n):
    out = torch.zeros((n,) + src.shape[1:], dtype=src.dtype)
    return out.index_add_(0, seg, src)
def _pad(x, pw):
    flat = tuple(v for pair in reversed(pw) for v in pair)
    return torch.nn.functional.pad(x, flat)

kernel_name = 'interleave_layers__spectral_gfnet__ssm_conv_s4__prompt'

def setup_inputs():

    _w = (lambda a: (lambda t: t.to(torch.bfloat16) if t.is_floating_point() else t)(torch.as_tensor(a)))
    def _A_setup():
        B, S, D = 1, 2048, 512
        Df = D // 2 + 1
        return {
            "x": _w((lambda *s: torch.randn(*s, dtype=torch.bfloat16) * 0.05)(B, S, D)),
            "w_r": _w((lambda *s: torch.randn(*s, dtype=torch.bfloat16) * 1.6)(S, Df) * 0.02),
            "w_i": _w((lambda *s: torch.randn(*s, dtype=torch.bfloat16) * 1.6)(S, Df) * 0.02),
        }
    _A_in = _A_setup()

    def _B_setup():
        B, L, D, N = 1, 2048, 512, 128
        A_re = -(lambda _x: torch.exp(torch.as_tensor(_x)))((lambda *s: torch.randn(*s, dtype=torch.bfloat16) * 6.4)(D, N))
        A_im = torch.pi * (lambda *s: torch.randn(*s, dtype=torch.bfloat16) * 0.05)(D, N)
        B_re = (lambda *s: torch.randn(*s, dtype=torch.bfloat16) * 0.05)(D, N)
        B_im = (lambda *s: torch.randn(*s, dtype=torch.bfloat16) * 0.05)(D, N)
        C_re = (lambda *s: torch.randn(*s, dtype=torch.bfloat16) * 0.05)(D, N)
        C_im = (lambda *s: torch.randn(*s, dtype=torch.bfloat16) * 0.05)(D, N)
        log_dt = (lambda *s: torch.randn(*s, dtype=torch.bfloat16) * 0.05)(D) * 0.5 - 4.0
        Dskip = (lambda *s: torch.randn(*s, dtype=torch.bfloat16) * 0.05)(D)
        return {
            "u": _w((lambda *s: torch.randn(*s, dtype=torch.bfloat16) * 0.05)(B, L, D)),
            "A_re": _w(A_re),
            "A_im": _w(A_im),
            "B_re": _w(B_re),
            "B_im": _w(B_im),
            "C_re": _w(C_re),
            "C_im": _w(C_im),
            "log_dt": _w(log_dt),
            "Dskip": _w(Dskip),
        }
    _B_in = _B_setup()

    return {
        "A_x": _A_in["x"],
        "A_w_r": _A_in["w_r"],
        "A_w_i": _A_in["w_i"],
        "B_u": _B_in["u"],
        "B_A_re": _B_in["A_re"],
        "B_A_im": _B_in["A_im"],
        "B_B_re": _B_in["B_re"],
        "B_B_im": _B_in["B_im"],
        "B_C_re": _B_in["C_re"],
        "B_C_im": _B_in["C_im"],
        "B_log_dt": _B_in["log_dt"],
        "B_Dskip": _B_in["Dskip"],
    }

def reference(A_x, A_w_r, A_w_i, B_u, B_A_re, B_A_im, B_B_re, B_B_im, B_C_re, B_C_im, B_log_dt, B_Dskip):
    def _A_ref(x, w_r, w_i):
        B, S, D = x.shape
        X = (lambda x, axes=(-2,-1): torch.fft.rfft2(x.float(), dim=axes))(x, axes=(-2, -1))
        W = w_r + 1j * w_i
        X = X * W
        y = (lambda x, s, axes=(-2,-1): torch.fft.irfft2(x, s=s, dim=axes).to(torch.bfloat16))(X, (S, D), axes=(-2, -1))
        return y

    def _B_ref(u, A_re, A_im, B_re, B_im, C_re, C_im, log_dt, Dskip):
        Bsz, L, D = u.shape
        dt = torch.exp(log_dt)[:, None]
        A = A_re + 1j * A_im
        Bc = B_re + 1j * B_im
        Cc = C_re + 1j * C_im
        logdA = dt * A
        dB = dt * Bc
        l = (lambda x, dt: x.to(dt))(torch.arange(L), A_re.dtype)
        P = torch.exp(logdA[:, :, None] * l[None, None, :])
        K = torch.einsum("dn,dnl,dn->dl", Cc, P, dB).real
        L2 = 2 * L
        Kp = _pad(K, ((0, 0), (0, L)))
        up = (lambda x, *d: x.permute(*d))(u, 0, 2, 1)
        up = _pad(up, ((0, 0), (0, 0), (0, L)))
        Kf = (lambda x, axes=(-2,-1): torch.fft.rfft2(x.float(), dim=axes))(Kp[:, None, :], axes=(-2, -1))
        Uf = (lambda x, axes=(-2,-1): torch.fft.rfft2(x.float(), dim=axes))(up[:, :, None, :], axes=(-2, -1))
        Yf = Uf * Kf[None, :, :, :]
        y = (lambda x, s, axes=(-2,-1): torch.fft.irfft2(x, s=s, dim=axes).to(torch.bfloat16))(Yf, (1, L2), axes=(-2, -1))[:, :, 0, :L]
        y = (lambda x, *d: x.permute(*d))(y, 0, 2, 1) + u * Dskip[None, None, :]
        return y

    x = A_x
    x = x + _A_ref(_layernorm(x, axis=-1), A_w_r, A_w_i)
    x = x + _B_ref(_layernorm(x, axis=-1), B_A_re, B_A_im, B_B_re, B_B_im, B_C_re, B_C_im, B_log_dt, B_Dskip)
    x = x + _A_ref(_layernorm(x, axis=-1), A_w_r, A_w_i)
    x = x + _B_ref(_layernorm(x, axis=-1), B_A_re, B_A_im, B_B_re, B_B_im, B_C_re, B_C_im, B_log_dt, B_Dskip)
    return x
```

```python
import re

REG_RE = re.compile(r'^(v|a|s)(\d+)$')
RNG_RE = re.compile(r'^(v|a|s)\[(\d+):(\d+)\]$')

def regs_of(tok):
    tok = tok.strip()
    neg = tok.lstrip('-')
    if neg.startswith('abs(') and neg.endswith(')'): neg = neg[4:-1]
    if neg.startswith('|') and neg.endswith('|'): neg = neg[1:-1]
    m = REG_RE.match(neg)
    if m: return [(m.group(1), int(m.group(2)))]
    m = RNG_RE.match(neg)
    if m: return [(m.group(1), i) for i in range(int(m.group(2)), int(m.group(3)) + 1)]
    if neg == 'vcc': return [('s', 106), ('s', 107)]
    if neg == 'vcc_lo': return [('s', 106)]
    if neg == 'vcc_hi': return [('s', 107)]
    if neg == 'exec': return [('s', 126), ('s', 127)]
    if neg == 'm0': return [('s', 124)]
    return []

TRANS = ('v_exp_f32', 'v_log_f32', 'v_rcp_f32', 'v_rsq_f32', 'v_sqrt_f32', 'v_sin_f32', 'v_cos_f32')
MFMA_PASS = {'v_mfma_f32_16x16x32_f16': 4, 'v_mfma_f32_16x16x16_f16': 4, 'v_mfma_f32_32x32x16_f16': 8,
             'v_mfma_f32_16x16x32_bf16': 4, 'v_mfma_f32_32x32x16_bf16': 8}
N_VALU = {2: 5, 4: 8, 8: 12, 16: 20}
N_COVL = {2: 4, 4: 6, 8: 10, 16: 18}
N_CWAR = {2: 1, 4: 3, 8: 7, 16: 15}

class Ins:
    __slots__ = ('text', 'op', 'ops', 'mods', 'kind', 'defs', 'uses', 'dpp', 'passes', 'srcA', 'srcB', 'srcC', 'wide_store', 'data',
                 'sel_dst', 'comment', 'sgpr_uses_valu')
    def __init__(self, text):
        self.text = text
        body = text.split(';')[0].strip()
        parts = body.split(None, 1)
        self.op = parts[0]
        rest = parts[1] if len(parts) > 1 else ''
        toks = [t.strip() for t in rest.split(',')] if rest else []
        self.mods = ''
        if toks:
            last = toks[-1].split(None, 1)
            toks[-1] = last[0]
            self.mods = last[1] if len(last) > 1 else ''
        ops = []
        modtxt = self.mods
        seen_mod = False
        rebuilt = re.split(r'\s+(?=op_sel|neg_lo|neg_hi|offset|offen|row_|quad_perm|dst_sel|src0_sel|src1_sel|sc0|sc1|nt\b|clamp|mul:|div:|bound_ctrl|bank_mask|wave_|glc)', rest, maxsplit=1)
        opstr = rebuilt[0]
        self.mods = rebuilt[1] if len(rebuilt) > 1 else ''
        self.ops = [t.strip() for t in opstr.split(',')] if opstr.strip() else []
        self.classify()

    def classify(self):
        op, o = self.op, self.ops
        R = lambda i: regs_of(o[i]) if i < len(o) else []
        allr = lambda a: [r for t in o[a:] for r in regs_of(t)]
        self.defs, self.uses = [], []
        self.dpp = any(k in self.mods for k in ('row_', 'quad_perm', 'wave_'))
        self.passes = 0; self.srcA = self.srcB = self.srcC = []
        self.wide_store = False; self.data = []
        self.sel_dst = False
        if op.startswith('v_mfma'):
            self.kind = 'mfma'; self.passes = MFMA_PASS[op]
            self.defs = R(0); self.srcA, self.srcB, self.srcC = R(1), R(2), R(3)
            self.uses = self.srcA + self.srcB + self.srcC
        elif op.startswith('v_'):
            self.kind = 'trans' if op.replace('_e32', '').replace('_e64', '') in TRANS else 'valu'
            if op.startswith('v_cmp'):
                self.defs = R(0); self.uses = allr(1)
            elif op.startswith(('v_add_co', 'v_sub_co', 'v_subrev_co')):
                self.defs = R(0) + R(1); self.uses = allr(2)
            elif op.startswith(('v_addc_co', 'v_subb_co')):
                self.defs = R(0) + R(1); self.uses = allr(2)
            elif op.startswith('v_permlane') and 'swap' in op:
                self.defs = R(0) + R(1); self.uses = R(0) + R(1)
            elif op.startswith(('v_fmac', 'v_pk_fmac', 'v_writelane', 'v_fma_mixlo', 'v_fma_mixhi', 'v_dot2c')):
                self.defs = R(0); self.uses = allr(0)
                if op.startswith(('v_fma_mixlo', 'v_fma_mixhi')): self.sel_dst = True
            else:
                self.defs = R(0); self.uses = allr(1)
                if self.dpp: self.uses = self.uses + R(0)
                if 'dst_sel' in self.mods and 'dst_sel:DWORD' not in self.mods:
                    self.sel_dst = True; self.uses = self.uses + R(0)
        elif op.startswith('ds_'):
            if op.startswith(('ds_read', 'ds_bpermute', 'ds_permute', 'ds_swizzle')):
                self.kind = 'dsr'; self.defs = R(0); self.uses = allr(1)
                if 'd16' in op: self.uses = self.uses + R(0)
            else:
                self.kind = 'dsw'; self.uses = allr(0)
        elif op.startswith('buffer_load') or op.startswith('global_load'):
            self.kind = 'vld'; self.defs = R(0); self.uses = allr(1)
            if 'd16' in op: self.uses = self.uses + R(0)
        elif op.startswith('buffer_store'):
            self.kind = 'vst'; self.uses = allr(0); self.data = R(0)
            self.wide_store = op.endswith(('x3', 'x4'))
        elif op.startswith('global_store'):
            self.kind = 'vst'; self.uses = allr(0); self.data = R(1)
            self.wide_store = op.endswith(('x3', 'x4'))
        elif op.startswith(('buffer_atomic', 'global_atomic')):
            self.kind = 'vst'; self.uses = allr(0)
            if 'sc0' in self.mods: self.kind = 'vld'; self.defs = R(0)
        elif op.startswith(('buffer_wbl2', 'buffer_inv')):
            self.kind = 'vst'
        elif op.startswith(('s_load', 's_memtime', 's_memrealtime')):
            self.kind = 'smem'; self.defs = R(0); self.uses = allr(1)
        elif op in ('s_waitcnt',): self.kind = 'wait'
        elif op == 's_nop': self.kind = 'nop'
        elif op == 's_barrier': self.kind = 'barrier'
        elif op.startswith(('s_cbranch', 's_branch', 's_endpgm', 's_setpc')): self.kind = 'branch'; self.uses = allr(0)
        elif op.startswith(('s_cmp', 's_bitcmp')): self.kind = 'salu'; self.uses = allr(0)
        elif op.startswith(('s_setprio', 's_sleep')): self.kind = 'salu'
        elif op.startswith('s_'):
            self.kind = 'salu'; self.defs = R(0); self.uses = allr(1)
            if 'saveexec' in op:
                self.defs = self.defs + regs_of('exec'); self.uses = self.uses + regs_of('exec')
            if op.startswith(('s_addk', 's_mulk', 's_cmov')): self.uses = self.uses + R(0)
        else:
            raise ValueError('unknown op ' + self.text)

class Prog:
    def __init__(self):
        self.items = []
    def __call__(self, text):
        for line in text.split('\n'):
            s = line.strip()
            if not s: continue
            self.items.append(s)
    def label(self, name): self.items.append(name + ':')
    def raw(self, text): self.items.append('.raw ' + text)

def parse_wait(ins):
    vm = lg = None
    m = re.search(r'vmcnt\((\d+)\)', ins.text); vm = int(m.group(1)) if m else None
    m = re.search(r'lgkmcnt\((\d+)\)', ins.text); lg = int(m.group(1)) if m else None
    return vm, lg

def finalize(items, stats=None):
    out = []
    pos = 0
    vq, lq = [], []
    valu_w, mfma_w, mfma_cr, sgpr_w, store_d = {}, {}, {}, {}, {}
    trans_w, sel_w = {}, {}
    nnop = nwait = 0
    def emit(t, states=1):
        nonlocal pos
        out.append('  ' + t); pos += states
    def nops(n):
        nonlocal nnop
        nnop += n
        while n > 0:
            k = min(n, 16); emit(f's_nop {k-1}', k); n -= k
    def flush_hazards():
        need = 0
        for d, extra in ((valu_w, 2), (trans_w, 2), (sel_w, 2), (sgpr_w, 5), (store_d, 2)):
            for r, p in d.items(): need = max(need, extra - (pos - p - 1))
        for r, (p, ps, tup) in mfma_w.items(): need = max(need, N_VALU[ps] - (pos - p - 1))
        for r, (p, ps) in mfma_cr.items(): need = max(need, N_CWAR[ps] - (pos - p - 1))
        if need > 0: nops(need)
    def do_wait(vm, lg):
        nonlocal vq, lq, nwait
        t = []
        if vm is not None: t.append(f'vmcnt({vm})'); vq = vq[max(0, len(vq) - vm):] if vm < len(vq) else vq
        if lg is not None: t.append(f'lgkmcnt({lg})'); lq = lq[max(0, len(lq) - lg):] if lg < len(lq) else lq
        emit('s_waitcnt ' + ' '.join(t)); nwait += 1
    for it in items:
        if it.startswith(';'): out.append('  ' + it); continue
        if it.startswith('.raw '): out.append(it[5:]); continue
        if it.startswith('.'): out.append(it); continue
        if it.endswith(':'):
            flush_hazards(); out.append(it); continue
        ins = Ins(it)
        k = ins.kind
        if k == 'wait':
            vm, lg = parse_wait(ins)
            if vm is not None and vm < len(vq): vq = vq[len(vq) - vm:] if vm > 0 else []
            if lg is not None:
                if lg == 0: lq = []
                elif lg < len(lq) and not any(e[1] == 'smem' for e in lq): lq = lq[len(lq) - lg:]
            emit(ins.text); continue
        if k == 'nop':
            n = int(ins.ops[0]) + 1; emit(ins.text, n); continue
        touched = set(ins.defs) | set(ins.uses)
        vm = lg = None
        for i, (d, kk) in enumerate(vq):
            if d & touched: vm = len(vq) - i - 1
        for i, (d, kk) in enumerate(lq):
            if d & touched: lg = 0 if any(e[1] == 'smem' for e in lq) else len(lq) - i - 1
        if k == 'barrier' and any(e[1] in ('dsw', 'dsr') for e in lq): lg = 0
        if vm is not None: vm = min(vm, 63)
        if lg is not None: lg = min(lg, 15)
        if vm is not None or lg is not None: do_wait(vm, lg)
        need = 0
        def req(prod_pos, states):
            nonlocal need
            need = max(need, states - (pos - prod_pos - 1))
        isvalu = k in ('valu', 'trans')
        for r in ins.uses:
            if r in valu_w:
                if k == 'mfma': req(valu_w[r], 2)
                elif ins.dpp or (ins.op.startswith('v_permlane')): req(valu_w[r], 2)
                elif ins.op.startswith(('v_readlane', 'v_readfirstlane')): req(valu_w[r], 1)
            if r in trans_w and k != 'trans': req(trans_w[r], 1)
            if r in sel_w: req(sel_w[r], 1)
            if r in mfma_w:
                p, ps, tup = mfma_w[r]
                if k == 'mfma' and r in ins.srcC and r not in ins.srcA and r not in ins.srcB:
                    if tuple(ins.srcC) == tup and ps == ins.passes: pass
                    else: req(p, N_COVL[ps])
                else: req(p, N_VALU[ps])
            if r[0] == 's' and r in sgpr_w:
                if isvalu or k == 'mfma':
                    req(sgpr_w[r], 4 if ins.op.startswith(('v_readlane', 'v_writelane')) else 2)
                elif k in ('vld', 'vst'): req(sgpr_w[r], 5)
        for r in ins.defs:
            if r in mfma_w:
                p, ps, tup = mfma_w[r]
                if k == 'mfma':
                    if not (tuple(ins.srcC) == tup and ps == ins.passes): req(p, N_COVL[ps])
                else: req(p, N_VALU[ps])
            if r in mfma_cr and k != 'mfma':
                p, ps = mfma_cr[r]; req(p, N_CWAR[ps])
            if r in store_d and k != 'vst': req(store_d[r], 2)
        if k == 'branch':
            flush_hazards()
        if need > 0: nops(need)
        p = pos
        emit(ins.text)
        for r in ins.defs:
            for dct in (valu_w, trans_w, sel_w, mfma_w): dct.pop(r, None)
            if r[0] == 's': sgpr_w.pop(r, None)
        if isvalu:
            for r in ins.defs:
                if r[0] == 's': sgpr_w[r] = p
                else:
                    valu_w[r] = p
                    if k == 'trans': trans_w[r] = p
                    if ins.sel_dst: sel_w[r] = p
        if k == 'mfma':
            for r in ins.defs: mfma_w[r] = (p, ins.passes, tuple(ins.defs))
            for r in ins.srcC: mfma_cr[r] = (p, ins.passes)
        if k == 'vst':
            vq.append((set(), 'st'))
            if ins.wide_store:
                for r in ins.data: store_d[r] = p
        if k == 'vld': vq.append((set(ins.defs), 'ld'))
        if k == 'dsr': lq.append((set(ins.defs), 'dsr'))
        if k == 'dsw': lq.append((set(), 'dsw'))
        if k == 'smem': lq.append((set(ins.defs), 'smem'))
        if k == 'barrier': pass
    if stats is not None:
        stats.update(nop_states=nnop, waits=nwait, lines=len(out))
    return out
```

```python
from asmgen import Prog
import tables

BLOB, TOFF = tables.build()

def E(x): return (x - 1) * 0x200000
X0L, WT, WQ, KN, SSC = 0x1000000, 0x1200000, 0x1400000, 0x1500000, 0x1700000
WS_BYTES = 0x1800000

def vr(base, n=1, p='v'):
    return f'{p}{base}' if n == 1 else f'{p}[{base}:{base+n-1}]'

def srd(p, dst, src, nbytes):
    p(f'''s_mov_b32 s{dst}, s{src}
          s_and_b32 s{dst+1}, s{src+1}, 0xffff
          s_mov_b32 s{dst+2}, {nbytes:#x}
          s_mov_b32 s{dst+3}, 0x20000''')

def table_srd(p, dst, label):
    p(f's_getpc_b64 s[{dst}:{dst+1}]')
    p.label(label)
    p(f'''s_add_u32 s{dst}, s{dst}, dft_tables-{label}
          s_addc_u32 s{dst+1}, s{dst+1}, 0
          s_and_b32 s{dst+1}, s{dst+1}, 0xffff
          s_mov_b32 s{dst+2}, {TOFF['SIZE']:#x}
          s_mov_b32 s{dst+3}, 0x20000''')

def load_table(p, name, nquads, dst, prefix, vaddr, stb, stmp):
    off = TOFF[name]
    for q in range(nquads):
        if q % 4 == 0: p(f's_mov_b32 s{stmp}, {off + q * 1024:#x}')
        p(f'buffer_load_dwordx4 {vr(dst + 4 * q, 4, prefix)}, v{vaddr}, s[{stb}:{stb+3}], s{stmp} offen offset:{(q % 4) * 1024}')

def cmul(p, dst, z, tw, conj=False):
    if not conj:
        p(f'v_pk_mul_f16 v{dst}, v{z}, v{tw} op_sel:[0,0] op_sel_hi:[0,1]')
        p(f'v_pk_fma_f16 v{dst}, v{z}, v{tw}, v{dst} op_sel:[1,1,0] op_sel_hi:[1,0,1] neg_lo:[1,0,0]')
    else:
        p(f'v_pk_mul_f16 v{dst}, v{z}, v{tw} op_sel:[0,0] op_sel_hi:[0,1] neg_hi:[0,1]')
        p(f'v_pk_fma_f16 v{dst}, v{z}, v{tw}, v{dst} op_sel:[1,1,0] op_sel_hi:[1,0,1] neg_lo:[1,0,0] neg_hi:[1,0,0]')

def cvt_cmul_block(p, items, tmp, ntmp, conj=False):
    for i0 in range(0, len(items), ntmp):
        grp = items[i0:i0 + ntmp]
        for k, (dst, re, im, tw) in enumerate(grp): p(f'v_cvt_pk_f16_f32 v{tmp+k}, v{re}, v{im}')
        for k, (dst, re, im, tw) in enumerate(grp):
            p(f'v_pk_mul_f16 v{dst}, v{tmp+k}, v{tw} op_sel:[0,0] op_sel_hi:[0,1]' + (' neg_hi:[0,1]' if conj else ''))
        for k, (dst, re, im, tw) in enumerate(grp):
            p(f'v_pk_fma_f16 v{dst}, v{tmp+k}, v{tw}, v{dst} op_sel:[1,1,0] op_sel_hi:[1,0,1] neg_lo:[1,0,0]' + (' neg_hi:[1,0,0]' if conj else ''))

def mfma(p, d, a, b, c=None, pa='v', pb='v', k16=False):
    op = 'v_mfma_f32_16x16x16_f16' if k16 else 'v_mfma_f32_16x16x32_f16'
    n = 2 if k16 else 4
    cs = '0' if c is None else vr(c, 4)
    p(f'{op} {vr(d, 4)}, {vr(a, n, pa)}, {vr(b, n, pb)}, {cs}')

def rbf(p, r):
    p(f'v_cvt_pk_bf16_f32 v{r}, v{r}, v{r}')
    p(f'v_lshlrev_b32 v{r}, 16, v{r}')

def layernorm(p, X, Uo, T, sc):
    A, B, C, D_, P, Q = T, T + 1, T + 2, T + 3, T + 4, T + 5
    for rho, (s1, s2) in enumerate(((A, C), (B, D_))):
        x = X + 8 * rho
        p(f'v_add_f32 v{s1}, v{x}, v{x+1}')
        p(f'v_mul_f32 v{s2}, v{x}, v{x}')
    for k in range(1, 8):
        for rho, (s1, s2) in enumerate(((A, C), (B, D_))):
            x = X + 8 * rho
            if k >= 2: p(f'v_add_f32 v{s1}, v{s1}, v{x+k}')
            p(f'v_fmac_f32 v{s2}, v{x+k}, v{x+k}')
    p(f'''v_permlane32_swap_b32 v{A}, v{B}
          v_permlane32_swap_b32 v{C}, v{D_}
          v_add_f32 v{P}, v{A}, v{B}
          v_add_f32 v{Q}, v{C}, v{D_}
          v_permlane16_swap_b32 v{P}, v{Q}
          v_add_f32 v{P}, v{P}, v{Q}
          v_add_f32 v{P}, v{P}, v{P} row_ror:8
          v_add_f32 v{P}, v{P}, v{P} row_ror:4
          v_add_f32 v{P}, v{P}, v{P} row_ror:2
          v_add_f32 v{P}, v{P}, v{P} row_ror:1
          v_mov_b32 v{Q}, v{P}
          v_permlane16_swap_b32 v{P}, v{Q}''')
    p(f'''s_mov_b32 s{sc}, 0x3b000000
          s_mov_b32 s{sc+1}, 0x3727c5ac
          v_mul_f32 v{P}, s{sc}, v{P}
          v_mul_f32 v{Q}, s{sc}, v{Q}
          v_fma_f32 v{Q}, -v{P}, v{P}, v{Q}
          v_max_f32 v{Q}, 0, v{Q}''')
    rbf(p, P); rbf(p, Q)
    p(f'v_add_f32 v{Q}, s{sc+1}, v{Q}')
    rbf(p, Q)
    p(f'v_sqrt_f32 v{Q}, v{Q}')
    rbf(p, Q)
    p(f'''v_rcp_f32 v{Q}, v{Q}
          v_mul_f32 v{P}, v{P}, v{Q}
          v_mov_b32 v{A}, v{Q}
          v_mov_b32 v{B}, v{P}
          v_permlane32_swap_b32 v{Q}, v{A}
          v_permlane32_swap_b32 v{P}, v{B}''')
    for k in range(8):
        p(f'v_fma_f32 v{Uo+k}, v{X+k}, v{Q}, -v{P}')
        p(f'v_fma_f32 v{Uo+8+k}, v{X+8+k}, v{A}, -v{B}')

def rfwd_dft(p, U, R, pfx):
    A, D, B, X, N, O, T = R['A'], R['D'], R['B'], R['X'], R['N'], R['O'], R['T']
    for rho in range(2):
        for q in range(4):
            p(f'v_cvt_pk_f16_f32 v{A+4*rho+q}, v{U+8*rho+2*q}, v{U+8*rho+2*q+1}')
    for rho in range(2):
        for t in range(2):
            for o in range(2):
                mfma(p, D + 16 * rho + 8 * t + 4 * o, A + 4 * rho, R['RF1'] + 8 * t + 4 * o, None, 'v', pfx)
    for rho in range(2):
        items = [(B + 8 * rho + 4 * t + r, D + 16 * rho + 8 * t + r, D + 16 * rho + 8 * t + 4 + r, R['TRF'] + 4 * t + r) for t in range(2) for r in range(4)]
        cvt_cmul_block(p, items, T, 8)
    for rho in range(2):
        for t in range(2): mfma(p, X + 8 * rho + 4 * t, R['RF2'], B + 8 * rho + 4 * t, None, pfx, 'v')
        mfma(p, N + 4 * rho, R['RFN'], B + 8 * rho, None, pfx, 'v')
    for rho in range(2):
        p(f'v_cndmask_b32 v{X+8*rho+1}, v{X+8*rho+1}, v{N+4*rho+1}, s[{R["m0"]}:{R["m0"]+1}]')
    for t in range(2):
        for e in range(2):
            for rho in range(2):
                x = X + 8 * rho + 4 * t + 2 * e
                p(f'v_cvt_pk_f16_f32 v{O+4*t+2*e+rho}, v{x}, v{x+1}')

def emit_tables():
    lines = ['.p2align 8', '.type dft_tables,@object', 'dft_tables:']
    for i in range(0, len(BLOB), 8):
        lines.append('.long ' + ','.join(f'{v:#x}' for v in BLOB[i:i + 8]))
    lines.append(f'.size dft_tables, {len(BLOB) * 4}')
    return lines
```

```python
from common import *
from gen_prep import lam_from, row_base

L_INA = L_INB = L_ZS = L_CS = 0
L_MID = L_KST = L_PRE = 12288
L_REV = L_US = L_XS = 29696
MAIN_LDS = 41984
vGA, vLin, vCO, vSt, vLAw, vLAr, vMw, vLBw, vLBr, vZ0, vZ1, vUw, vCr, vSGN, vTc, vTw = range(1, 17)
SENT = 20
TA_, TB_, TRF, TRI, WW, WQr, KF, DSK, YSC, XR, UR = 24, 32, 40, 48, 56, 64, 72, 88, 96, 104, 120
RA, RB, RC, RD = 136, 168, 200, 232
aF64, aF32, aGF, aGI, aRF1, aRF2, aRFN, aRI2, aRI1 = 0, 32, 64, 80, 96, 112, 116, 120, 124
N_AGPR = 140
sWS, sOUT, sTB, sDS = 8, 12, 16, 20
sLAM, sW, sBUD, sRB = 24, 25, 26, 27
sI0, sI1, sO0, sO1, sC0, sC1, sT = 28, 29, 30, 31, 32, 33, 34
sM0 = 40
POLL_BUDGET = 40000

class Gen:
    def __init__(self, stop_after=None, dbg=None):
        self.p = Prog(); self.n = 0; self.stop_after = stop_after; self.dbg = dbg; self.ns = 0

    def stamp(self):
        if not self.dbg: return
        self.p(f'''s_memtime s[62:63]
                   s_waitcnt lgkmcnt(0)
                   s_mov_b32 s{64 + self.ns}, s62''')
        self.ns += 1

    def dump_stamps(self):
        if not self.dbg: return
        p = self.p
        wg = self.dbg if isinstance(self.dbg, int) and self.dbg is not True else 0
        p(f'''s_memrealtime s[62:63]
              s_load_dwordx2 s[4:5], s[0:1], 104
              s_waitcnt lgkmcnt(0)
              s_mov_b32 s{64 + self.ns}, s62''')
        self.ns += 1
        srd(p, 44, 4, 256 if self.dbg != 'all' else 256)
        done = self.uid('nodump')
        if self.dbg == 'all':
            p(f'''s_lshl_b32 s{sT}, s2, 7
                  s_add_u32 s{sT}, s{sT}, 0x1780000''')
            for k in range(self.ns): p(f'v_mov_b32 v{RA+k}, s{64+k}')
            p(f'''v_cmp_eq_u32 vcc, 0, v0
                  s_and_saveexec_b64 s[48:49], vcc
                  s_cbranch_execz {done}
                  v_mov_b32 v{RD}, 0''')
            for k in range(self.ns): p(f'buffer_store_dword v{RA+k}, v{RD}, s[{sWS}:{sWS+3}], s{sT} offen offset:{4*k}')
        else:
            for k in range(self.ns): p(f'v_mov_b32 v{RA+k}, s{64+k}')
            p(f'''s_cmp_lg_u32 s2, 9
                  s_cbranch_scc1 {done}
                  v_cmp_eq_u32 vcc, 0, v0
                  s_and_saveexec_b64 s[48:49], vcc
                  s_cbranch_execz {done}
                  v_mov_b32 v{RD}, 0''')
            for k in range(1, min(self.ns, 17)):
                p(f'v_sub_u32 v{RA+k}, v{RA+k}, v{RA}') if k < self.ns - 1 else None
            for k in range(1, min(self.ns, 17)):
                p(f'buffer_store_dword v{RA+k}, v{RD}, s[44:47], 0 offen offset:{4*(k-1)}')
        p.label(done)
        p('s_mov_b64 exec, -1')

    def uid(self, s):
        self.n += 1; return f'{s}_{self.n}'

    def set_in(self, x):
        self.p(f'''s_lshl_b32 s{sI0}, s{sLAM}, 5
                   s_add_u32 s{sI0}, s{sI0}, {E(x):#x}
                   s_add_u32 s{sI1}, s{sI0}, 0x100000''')
    def set_own(self, s0, s1, base):
        self.p(f'''s_lshl_b32 s{s0}, s{sLAM}, 13
                   s_add_u32 s{s0}, s{s0}, {base:#x}
                   s_add_u32 s{s1}, s{s0}, 0x1000''')

    def gather(self, G, poll=True):
        p = self.p
        if not poll:
            p(f'buffer_load_dwordx4 v[{G}:{G+3}], v{vGA}, s[{sWS}:{sWS+3}], s{sI0} offen')
            p(f'buffer_load_dwordx4 v[{G+4}:{G+7}], v{vGA}, s[{sWS}:{sWS+3}], s{sI1} offen')
            return
        lp, done = self.uid('poll'), self.uid('polldone')
        p('s_waitcnt vmcnt(0)')
        p.label(lp)
        p(f'''buffer_load_dwordx4 v[{G}:{G+3}], v{vGA}, s[{sWS}:{sWS+3}], s{sI0} offen sc1
              buffer_load_dwordx4 v[{G+4}:{G+7}], v{vGA}, s[{sWS}:{sWS+3}], s{sI1} offen sc1
              s_waitcnt vmcnt(0)
              v_max3_u32 v{G+8}, v{G}, v{G+1}, v{G+2}
              v_max3_u32 v{G+9}, v{G+3}, v{G+4}, v{G+5}
              v_max3_u32 v{G+8}, v{G+8}, v{G+6}, v{G+7}
              v_max_u32 v{G+8}, v{G+8}, v{G+9}
              v_cmp_eq_u32 vcc, -1, v{G+8}
              s_cbranch_vccz {done}
              s_cmp_eq_u32 s{sBUD}, 0
              s_cbranch_scc1 {done}
              s_sub_u32 s{sBUD}, s{sBUD}, 1
              s_branch {lp}''')
        p.label(done)
        self.stamp()

    def clear(self, x):
        if x is None: return
        self.set_own(sC0, sC1, E(x))
        self.p(f'''buffer_store_dwordx4 v[{SENT}:{SENT+3}], v{vLin}, s[{sWS}:{sWS+3}], s{sC0} offen sc1
                   buffer_store_dwordx4 v[{SENT}:{SENT+3}], v{vLin}, s[{sWS}:{sWS+3}], s{sC1} offen sc1''')

    def step2(self, D, Bop):
        for nt in range(2):
            for mt in range(4):
                mfma(self.p, D + 4 * mt, aF32 + 8 * mt + 4 * nt, Bop + 4 * nt, None if nt == 0 else D + 4 * mt, 'a', 'v')

    def d2_items(self, dst, D, tw):
        return [(dst + 4 * (mt // 2) + 2 * (mt % 2) + h, D + 4 * mt + 2 * h, D + 4 * mt + 2 * h + 1,
                 None if tw is None else tw + 4 * (mt // 2) + 2 * (mt % 2) + h) for mt in range(4) for h in range(2)]

    def phase_ca(self, L, xin, xout, xclr, first):
        p = self.p
        G = RD
        if not first:
            self.set_in(xin); self.gather(G)
        p(f'''ds_write_b128 v{vLAw}, v[{G}:{G+3}] offset:{L_INA}
              ds_write_b128 v{vLAw}, v[{G+4}:{G+7}] offset:{L_INA+128}''')
        self.clear(xclr)
        p('s_barrier')
        A = RA
        for nt in range(2):
            for ks in range(4):
                p(f'ds_read_b128 v[{A+16*nt+4*ks}:{A+16*nt+4*ks+3}], v{vLAr} offset:{L_INA+nt*4352+ks*64}')
        D1 = RB
        for nt in range(2):
            for ks in range(4):
                for o in range(2):
                    d = D1 + 8 * o + 4 * nt
                    mfma(p, d, A + 16 * nt + 4 * ks, aF64 + 16 * o + 4 * ks, None if ks == 0 else d, 'v', 'a')
        Y = RC
        items = [(Y + 4 * nt + r, D1 + 4 * nt + r, D1 + 8 + 4 * nt + r, TA_ + 4 * nt + r) for nt in range(2) for r in range(4)]
        cvt_cmul_block(p, items, RD + 12, 8)
        D2 = RB + 16
        self.step2(D2, Y)
        VC = RC + 8
        sp, join = self.uid('ca_sp'), self.uid('ca_join')
        p('s_waitcnt vmcnt(2)')
        p(f's_cmp_eq_u32 s{sLAM}, 0')
        p(f's_cbranch_scc1 {sp}')
        cvt_cmul_block(p, self.d2_items(VC, D2, WW), RD + 12, 8, conj=True)
        p(f's_branch {join}')
        p.label(sp)
        Z = RC + 16; ZR = RC + 24; T0 = RD + 12
        for (dst, re, im, _) in self.d2_items(Z, D2, None): p(f'v_cvt_pk_f16_f32 v{dst}, v{re}, v{im}')
        p(f'''v_and_b32 v{T0}, 15, v0
              v_bfe_u32 v{T0+1}, v0, 4, 2
              v_lshl_add_u32 v{T0}, v{T0+1}, 8, v{T0}
              s_lshl_b32 s{sT}, s{sW}, 4
              v_add_u32 v{T0}, s{sT}, v{T0}
              v_lshlrev_b32 v{T0+1}, 2, v{T0}''')
        for ks in range(2):
            for q in range(4):
                p(f'ds_write_b32 v{T0+1}, v{Z+4*ks+q} offset:{L_REV+ks*4096+q*256}')
        p('s_barrier')
        for ks in range(2):
            for q in range(4):
                p(f'''v_sub_u32 v{T0+2}, {2048-1024*ks-64*q}, v{T0}
                      v_and_b32 v{T0+2}, 0x7ff, v{T0+2}
                      v_lshlrev_b32 v{T0+2}, 2, v{T0+2}
                      ds_read_b32 v{ZR+4*ks+q}, v{T0+2} offset:{L_REV}''')
        for k in range(8): cmul(p, VC + k, Z + k, WW + k, conj=True)
        for k in range(8):
            p(f'v_pk_fma_f16 v{VC+k}, v{ZR+k}, v{WQr+k}, v{VC+k} op_sel:[0,0,0] op_sel_hi:[0,1,1] neg_hi:[0,1,0]')
            p(f'v_pk_fma_f16 v{VC+k}, v{ZR+k}, v{WQr+k}, v{VC+k} op_sel:[1,1,0] op_sel_hi:[1,0,1]')
        p.label(join)
        D3 = RB
        self.step2(D3, VC)
        cvt_cmul_block(p, self.d2_items(Y, D3, TA_), RD + 12, 8)
        for nt in range(2):
            for q in range(4):
                p(f'ds_write_b32 v{vMw}, v{Y+4*nt+q} offset:{L_MID+(16*nt+q)*272}')
        p('s_barrier')
        for nt in range(2):
            for ks in range(4):
                p(f'ds_read_b128 v[{A+16*nt+4*ks}:{A+16*nt+4*ks+3}], v{vLAr} offset:{L_MID+nt*4352+ks*64}')
        D4 = RB + 16
        for nt in range(2):
            for ks in range(4):
                for o in range(2):
                    d = D4 + 8 * o + 4 * nt
                    mfma(p, d, aF64 + 16 * o + 4 * ks, A + 16 * nt + 4 * ks, None if ks == 0 else d, 'a', 'v')
        O = RD
        for nt in range(2):
            for r in range(4):
                p(f'v_cvt_pk_f16_f32 v{O+4*nt+r}, v{D4+4*nt+r}, -v{D4+8+4*nt+r}')
        self.set_own(sO0, sO1, E(xout))
        p('s_waitcnt vmcnt(0)')
        for nt in range(2):
            p(f'buffer_store_dwordx4 v[{O+4*nt}:{O+4*nt+3}], v{vCO}, s[{sWS}:{sWS+3}], s{sO0} offen offset:{nt*1024} sc1')

    def cb_forward(self, lds_in, dstZ, tw2=None, conj=False):
        p = self.p
        A = RA
        for ch in range(2):
            for nt in range(2):
                for ks in range(2):
                    r = A + 16 * ch + 8 * nt + 4 * ks
                    p(f'ds_read_b128 v[{r}:{r+3}], v{vLBr} offset:{lds_in+ch*4608+nt*2304+ks*64}')
        D1 = RB
        for ch in range(2):
            for nt in range(2):
                for ks in range(2):
                    for o in range(2):
                        d = D1 + 16 * ch + 8 * o + 4 * nt
                        mfma(p, d, A + 16 * ch + 8 * nt + 4 * ks, aGF + 8 * o + 4 * ks, None if ks == 0 else d, 'v', 'a')
        Y = RC
        for ch in range(2):
            items = [(Y + 8 * ch + 4 * nt + r, D1 + 16 * ch + 4 * nt + r, D1 + 16 * ch + 8 + 4 * nt + r, TB_ + 4 * nt + r)
                     for nt in range(2) for r in range(4)]
            cvt_cmul_block(p, items, RD + 12, 8)
        D2 = RA
        for ch in range(2): self.step2(D2 + 16 * ch, Y + 8 * ch)
        for ch in range(2):
            if tw2 is None:
                for (dst, re, im, _) in self.d2_items(dstZ + 8 * ch, D2 + 16 * ch, None): p(f'v_cvt_pk_f16_f32 v{dst}, v{re}, v{im}')
            else:
                cvt_cmul_block(p, self.d2_items(dstZ + 8 * ch, D2 + 16 * ch, tw2 + 8 * ch), RD + 12, 8, conj=conj)

    def phase_cb(self, L, xin, xout, xclr):
        p = self.p
        G = RD
        self.set_in(xin); self.gather(G)
        p(f'''ds_write_b128 v{vLBw}, v[{G}:{G+3}] offset:{L_INB}
              ds_write_b128 v{vLBw}, v[{G+4}:{G+7}] offset:{L_INB+64}''')
        self.clear(xclr)
        p('s_barrier')
        VC = RC + 16
        self.cb_forward(L_INB, VC, KF, conj=True)
        D3 = RB
        for ch in range(2): self.step2(D3 + 16 * ch, VC + 8 * ch)
        Y = RC
        for ch in range(2):
            cvt_cmul_block(p, self.d2_items(Y + 8 * ch, D3 + 16 * ch, TB_), RD + 12, 8)
        for ch in range(2):
            for nt in range(2):
                for q in range(4):
                    p(f'ds_write_b32 v{vMw}, v{Y+8*ch+4*nt+q} offset:{L_MID+ch*8704+(16*nt+q)*272}')
        p('s_barrier')
        Bop = {0: RA, 1: RC}
        for ch in range(2):
            for nt in range(2):
                for ks in range(4):
                    r = Bop[ch] + 16 * nt + 4 * ks
                    p(f'ds_read_b128 v[{r}:{r+3}], v{vLAr} offset:{L_MID+ch*8704+nt*4352+ks*64}')
        D4 = RB
        for ch in range(2):
            for ks in range(4):
                for nt in range(2):
                    d = D4 + 8 * ch + 4 * nt
                    mfma(p, d, aGI + 4 * ks, Bop[ch] + 16 * nt + 4 * ks, None if ks == 0 else d, 'a', 'v')
        O = RD
        for nt in range(2):
            for ch in range(2):
                for hh in range(2):
                    d = D4 + 8 * ch + 4 * nt + 2 * hh
                    p(f'v_cvt_pk_f16_f32 v{O+4*nt+2*ch+hh}, v{d}, v{d+1}')
        self.set_own(sO0, sO1, E(xout))
        p('s_waitcnt vmcnt(0)')
        for nt in range(2):
            p(f'buffer_store_dwordx4 v[{O+4*nt}:{O+4*nt+3}], v{vCO}, s[{sWS}:{sWS+3}], s{sO0} offen offset:{nt*1024} sc1')

    def store_linear(self, G, xout):
        p = self.p
        self.set_own(sO0, sO1, E(xout))
        p('s_waitcnt vmcnt(0)')
        p(f'buffer_store_dwordx4 v[{G}:{G+3}], v{vLin}, s[{sWS}:{sWS+3}], s{sO0} offen sc1')
        p(f'buffer_store_dwordx4 v[{G+4}:{G+7}], v{vLin}, s[{sWS}:{sWS+3}], s{sO1} offen sc1')

    def phase_ri(self, L, xin, xout, xclr):
        p = self.p
        G = RD
        self.set_in(xin); self.gather(G)
        p(f'''ds_write_b128 v{vSt}, v[{G}:{G+3}] offset:{L_ZS}
              ds_write_b128 v{vSt}, v[{G+4}:{G+7}] offset:{L_ZS+6144}''')
        self.clear(xclr)
        p('s_barrier')
        A = RA; NY = RA + 8; CI = RA + 12
        assert L_ZS % 256 == 0
        zb = L_ZS // 256
        for rho in range(2):
            for t in range(2):
                r = A + 4 * rho + 2 * t
                p(f'ds_read2st64_b32 v[{r}:{r+1}], v{vZ0 if rho == 0 else vZ1} offset0:{zb+3*t} offset1:{zb+3*t+6}')
        p(f'''s_lshl_b32 s{sT}, s{sW}, 3
              v_mov_b32 v{NY+2}, s{sT}
              ds_read_b64 v[{NY}:{NY+1}], v{NY+2} offset:{L_ZS}''')
        D = RB
        for rho in range(2):
            for t in range(2):
                for o in range(2):
                    mfma(p, D + 16 * rho + 8 * t + 4 * o, A + 4 * rho + 2 * t, aRI2 + 2 * o, None, 'v', 'a', k16=True)
        for rho in range(2):
            p(f'v_cvt_f32_f16_sdwa v{CI+4*rho}, v{NY+rho} dst_sel:DWORD dst_unused:UNUSED_PAD src0_sel:WORD_1')
        for rho in range(2): p(f'v_mul_f32 v{CI+4*rho}, v{CI+4*rho}, v{vSGN}')
        for rho in range(2):
            for k in range(1, 4): p(f'v_mov_b32 v{CI+4*rho+k}, v{CI+4*rho}')
        B = RC
        for rho in range(2):
            items = [(B + 8 * rho + 4 * t + r, D + 16 * rho + 8 * t + r, D + 16 * rho + 8 * t + 4 + r, TRI + 4 * t + r) for t in range(2) for r in range(4)]
            cvt_cmul_block(p, items, RD + 12, 8)
        Y = RB
        for t in range(2):
            for rho in range(2):
                for tp in range(2):
                    d = Y + 8 * rho + 4 * tp
                    mfma(p, d, aRI1 + 8 * tp + 4 * t, B + 8 * rho + 4 * t, CI + 4 * rho if t == 0 else d, 'a', 'v')
        for k in range(16): p(f'v_add_f32 v{XR+k}, v{XR+k}, v{Y+k}')
        layernorm(p, XR, UR, RD + 12, 36)
        O = RC + 16
        for k in range(8): p(f'v_cvt_pk_f16_f32 v{O+k}, v{UR+k}, v{UR+8+k}')
        for k in range(8):
            p(f'ds_write_b32 v{vUw}, v{O+k} offset:{L_US+4096*(k//4)+256*(k%4)}')
        p('s_barrier')
        p(f'''ds_read_b128 v[{G}:{G+3}], v{vLin} offset:{L_US}
              ds_read_b128 v[{G+4}:{G+7}], v{vLin} offset:{L_US+4096}''')
        self.store_linear(G, xout)

    def phase_rf(self, xin, xout, xclr):
        p = self.p
        G = RD
        self.set_in(xin); self.gather(G)
        p(f'''ds_write_b128 v{vSt}, v[{G}:{G+3}] offset:{L_CS}
              ds_write_b128 v{vSt}, v[{G+4}:{G+7}] offset:{L_CS+6144}''')
        self.clear(xclr)
        for k in range(8):
            p(f'v_fmac_f32 v{XR+k}, v{UR+k}, v{DSK+k}')
            p(f'v_fmac_f32 v{XR+8+k}, v{UR+8+k}, v{DSK+k}')
        p('s_barrier')
        C = RA
        for k in range(8):
            p(f'ds_read_b32 v{C+k}, v{vCr} offset:{L_CS+6144*(k//4)+384*(k%4)}')
        for k in range(8):
            p(f'v_fma_mix_f32 v{XR+k}, v{C+k}, v{YSC+k}, v{XR+k} op_sel:[0,0,0] op_sel_hi:[1,0,0]')
            p(f'v_fma_mix_f32 v{XR+8+k}, v{C+k}, v{YSC+k}, v{XR+8+k} op_sel:[1,0,0] op_sel_hi:[1,0,0]')
        U = RA + 8
        layernorm(p, XR, U, RD + 12, 36)
        R = dict(A=RC, D=RB, B=RC + 8, X=RA, N=RA + 16, O=RC + 24, T=RD + 12, RF1=aRF1, RF2=aRF2, RFN=aRFN, TRF=TRF, m0=sM0)
        rfwd_dft(p, U, R, 'a')
        O = RC + 24
        for t in range(2):
            for e in range(2):
                p(f'ds_write_b64 v{vZ0}, v[{O+4*t+2*e}:{O+4*t+2*e+1}] offset:{L_XS+768*t+1536*e}')
        p('s_barrier')
        p(f'''ds_read_b128 v[{G}:{G+3}], v{vSt} offset:{L_XS}
              ds_read_b128 v[{G+4}:{G+7}], v{vSt} offset:{L_XS+6144}''')
        self.store_linear(G, xout)

    def pre_final(self):
        p = self.p
        T = RA
        for k in range(8):
            for rho in range(2):
                p(f'v_fma_f32 v{T+2*k+rho}, v{UR+8*rho+k}, v{DSK+k}, v{XR+8*rho+k}')
        a = RD + 12
        p(f'''v_and_b32 v{a}, 15, v0
              v_bfe_u32 v{a+1}, v0, 4, 2
              v_lshl_add_u32 v{a}, v{a+1}, 6, v{a}
              v_lshlrev_b32 v{a}, 5, v{a}
              s_lshl_b32 s{sT}, s{sW}, 3
              v_add_u32 v{a}, s{sT}, v{a}''')
        for k in range(8):
            p(f'ds_write_b64 v{a}, v[{T+2*k}:{T+2*k+1}] offset:{L_PRE+8192*(k//4)+512*(k%4)}')
        p(f'''v_lshrrev_b32 v{a+1}, 1, v0
              v_lshlrev_b32 v{a+1}, 6, v{a+1}
              v_and_b32 v{a+2}, 1, v0
              v_lshl_add_u32 v{a+1}, v{a+2}, 4, v{a+1}
              s_barrier''')
        for e in range(2):
            for ch in range(2):
                r = XR + 8 * e + 4 * ch
                p(f'ds_read_b128 v[{r}:{r+3}], v{a+1} offset:{L_PRE+e*8192+ch*32}')
        p(f'''v_lshrrev_b32 v{a+3}, 1, v0
              v_lshlrev_b32 v{a+3}, 3, v{a+3}
              s_mov_b32 s{sT}, {SSC:#x}
              buffer_load_dwordx2 v[{UR}:{UR+1}], v{a+3}, s[{sWS}:{sWS+3}], s{sT} offen
              buffer_load_dwordx2 v[{UR+2}:{UR+3}], v{a+3}, s[{sWS}:{sWS+3}], s{sT} offen offset:1024''')
        for k in range(4): p(f'v_mul_f32 v{UR+k}, 0x41800000, v{UR+k}')
        p(f'''v_and_b32 v{UR+4}, 1, v0
              v_lshlrev_b32 v{UR+4}, 17, v{UR+4}
              v_lshrrev_b32 v{UR+5}, 1, v0
              v_lshl_add_u32 v{UR+4}, v{UR+5}, 2, v{UR+4}''')

    def phase_final(self, xin):
        p = self.p
        G = RD
        self.set_in(xin); self.gather(G)
        O = RA
        for e in range(2):
            for ch in range(2):
                for r in range(4):
                    x = XR + 8 * e + 4 * ch + r
                    p(f'v_fma_mix_f32 v{x}, v{G+4*e+2*ch+r//2}, v{UR+2*e+ch}, v{x} op_sel:[{r%2},0,0] op_sel_hi:[1,0,0]')
        for e in range(2):
            for r in range(4):
                p(f'v_cvt_pk_bf16_f32 v{O+4*e+r}, v{XR+8*e+r}, v{XR+8*e+4+r}')
        p(f's_lshl_b32 s{sT}, s{sRB}, 10')
        for r in range(4):
            for e in range(2):
                p(f's_add_u32 s{sT+1}, s{sT}, {r*32768+e*512}')
                p(f'buffer_store_dword v{O+4*e+r}, v{UR+4}, s[{sOUT}:{sOUT+3}], s{sT+1} offen')

    def prologue(self, name):
        p = self.p
        p(f'''s_cmp_ge_u32 s2, 256
              s_cbranch_scc1 main_exit
              s_load_dwordx2 s[4:5], s[0:1], 112
              s_load_dwordx2 s[6:7], s[0:1], 96
              s_load_dwordx2 s[36:37], s[0:1], 88''')
        self.stamp()
        lam_from(p, 2, sLAM, sT)
        row_base(p, sLAM, sRB, sT, sT + 1)
        T = RA
        p(f'''v_lshrrev_b32 v{T}, 6, v0
              v_readfirstlane_b32 s{sW}, v{T}
              v_and_b32 v{T+1}, 63, v0          ; lane
              v_and_b32 v{T+2}, 15, v0          ; i
              v_bfe_u32 v{T+3}, v0, 4, 2        ; g
              v_lshrrev_b32 v{T+4}, 1, v0       ; t/2
              v_and_b32 v{T+5}, 1, v0           ; t%2
              v_lshlrev_b32 v{vGA}, 13, v{T+4}
              v_lshl_add_u32 v{vGA}, v{T+5}, 4, v{vGA}
              v_lshlrev_b32 v{vLin}, 4, v0
              v_lshlrev_b32 v{vTc}, 4, v{T+1}
              s_mul_i32 s{sT}, s{sW}, {TOFF['WSTRIDE']}
              v_add_u32 v{vTw}, s{sT}, v{vTc}
              s_mov_b32 s{sBUD}, {POLL_BUDGET}
              s_mov_b64 s[{sM0}:{sM0+1}], 1
              s_waitcnt lgkmcnt(0)''')
        srd(p, sWS, 4, WS_BYTES)
        table_srd(p, sTB, 'main_pc')
        self.set_in(1); self.gather(RD, poll=False)
        load_table(p, 'F64', 8, aF64, 'a', vTw, sTB, sT)
        load_table(p, 'TA', 2, TA_, 'v', vTw, sTB, sT)
        load_table(p, 'F32C', 8, aF32, 'a', vTc, sTB, sT)
        p(f'''s_lshl_b32 s{sT}, s{sLAM}, 13
              s_add_u32 s{sT}, s{sT}, {WT:#x}
              s_lshl_b32 s{sT+1}, s{sW}, 11
              s_add_u32 s{sT}, s{sT}, s{sT+1}
              buffer_load_dwordx4 v[{WW}:{WW+3}], v{vTc}, s[{sWS}:{sWS+3}], s{sT} offen
              buffer_load_dwordx4 v[{WW+4}:{WW+7}], v{vTc}, s[{sWS}:{sWS+3}], s{sT} offen offset:1024
              s_add_u32 s{sT+1}, s{sT+1}, {WQ:#x}
              buffer_load_dwordx4 v[{WQr}:{WQr+3}], v{vTc}, s[{sWS}:{sWS+3}], s{sT+1} offen
              buffer_load_dwordx4 v[{WQr+4}:{WQr+7}], v{vTc}, s[{sWS}:{sWS+3}], s{sT+1} offen offset:1024''')
        srd(p, sOUT, 6, 0x200000)
        srd(p, sDS, 36, 1024)
        p(f'''v_mul_u32_u24 v{vSt}, 48, v{T+4}
              v_lshl_add_u32 v{vSt}, v{T+5}, 4, v{vSt}
              v_lshlrev_b32 v{vCO}, 6, v{T+2}
              v_lshl_add_u32 v{vCO}, v{T+3}, 4, v{vCO}
              s_lshl_b32 s{sT}, s{sW}, 11
              v_add_u32 v{vCO}, s{sT}, v{vCO}
              v_mul_u32_u24 v{vLAr}, 272, v{T+2}
              v_lshl_add_u32 v{vLAr}, v{T+3}, 4, v{vLAr}
              v_mul_u32_u24 v{vLBr}, 144, v{T+2}
              v_lshl_add_u32 v{vLBr}, v{T+3}, 4, v{vLBr}
              v_mul_u32_u24 v{vMw}, {4*272}, v{T+3}
              v_lshl_add_u32 v{vMw}, v{T+2}, 2, v{vMw}
              s_lshl_b32 s{sT}, s{sW}, 6
              v_add_u32 v{vMw}, s{sT}, v{vMw}''')
        p(f'''v_and_b32 v{T+6}, 63, v{T+4}
              v_lshrrev_b32 v{T+6}, 1, v{T+6}        ; n2
              v_lshrrev_b32 v{T+7}, 6, v{T+4}
              v_lshlrev_b32 v{T+7}, 1, v{T+7}
              v_and_b32 v{T+8}, 1, v{T+4}
              v_add_u32 v{T+7}, v{T+7}, v{T+8}       ; a
              v_mul_u32_u24 v{vLAw}, 272, v{T+6}
              v_lshl_add_u32 v{vLAw}, v{T+7}, 5, v{vLAw}
              v_lshl_add_u32 v{vLAw}, v{T+5}, 4, v{vLAw}
              v_mul_u32_u24 v{vLBw}, 144, v{T+6}
              v_lshl_add_u32 v{vLBw}, v{T+7}, 4, v{vLBw}
              v_mul_u32_u24 v{T+8}, 4608, v{T+5}
              v_add_u32 v{vLBw}, v{vLBw}, v{T+8}''')
        p(f'''v_lshl_add_u32 v{T+6}, v{T+3}, 6, v{T+2}   ; i + 64 g
              v_mul_u32_u24 v{vZ0}, 48, v{T+6}
              s_lshl_b32 s{sT}, s{sW}, 3
              v_add_u32 v{vZ0}, s{sT}, v{vZ0}
              v_add_u32 v{vZ1}, 4, v{vZ0}
              v_lshlrev_b32 v{vUw}, 4, v{T+6}
              s_lshl_b32 s{sT}, s{sW}, 2
              v_add_u32 v{vUw}, s{sT}, v{vUw}
              v_lshrrev_b32 v{T+7}, 1, v{T+2}
              v_lshl_add_u32 v{T+7}, v{T+3}, 5, v{T+7}   ; 32 g + i/2
              v_mul_u32_u24 v{vCr}, 48, v{T+7}
              v_and_b32 v{T+8}, 1, v{T+2}
              v_lshl_add_u32 v{vCr}, v{T+8}, 3, v{vCr}
              s_lshr_b32 s{sT}, s{sW}, 1
              s_lshl_b32 s{sT}, s{sT}, 4
              s_and_b32 s{sT+1}, s{sW}, 1
              s_lshl_b32 s{sT+1}, s{sT+1}, 2
              s_add_u32 s{sT}, s{sT}, s{sT+1}
              v_add_u32 v{vCr}, s{sT}, v{vCr}
              v_lshlrev_b32 v{T+8}, 31, v{T+8}
              v_xor_b32 v{vSGN}, 0x3b800000, v{T+8}
              v_mov_b32 v{SENT}, -1
              v_mov_b32 v{SENT+1}, -1
              v_mov_b32 v{SENT+2}, -1
              v_mov_b32 v{SENT+3}, -1''')

    def prefetch_after_ca0(self):
        p = self.p
        load_table(p, 'RI2', 1, aRI2, 'a', vTc, sTB, sT)
        load_table(p, 'RI1', 4, aRI1, 'a', vTc, sTB, sT)
        load_table(p, 'TRI', 2, TRI, 'v', vTc, sTB, sT)
        p(f'''s_lshl_b32 s{sT}, s{sLAM}, 13
              s_lshl_b32 s{sT+1}, s{sW}, 11
              s_add_u32 s{sT}, s{sT}, s{sT+1}
              s_add_u32 s{sT}, s{sT}, {X0L:#x}
              buffer_load_dwordx4 v[{UR}:{UR+3}], v{vTc}, s[{sWS}:{sWS+3}], s{sT} offen
              buffer_load_dwordx4 v[{UR+4}:{UR+7}], v{vTc}, s[{sWS}:{sWS+3}], s{sT} offen offset:1024''')
        load_table(p, 'GF', 4, aGF, 'a', vTw, sTB, sT)
        load_table(p, 'TB', 2, TB_, 'v', vTw, sTB, sT)
        self.set_own(sT, sT + 1, KN)
        p(f'''buffer_load_dwordx4 v[{KF}:{KF+3}], v{vLin}, s[{sWS}:{sWS+3}], s{sT} offen
              buffer_load_dwordx4 v[{KF+4}:{KF+7}], v{vLin}, s[{sWS}:{sWS+3}], s{sT+1} offen''')
        for k in range(8):
            p(f'v_lshlrev_b32 v{XR+k}, 16, v{UR+k}')
            p(f'v_and_b32 v{XR+8+k}, 0xffff0000, v{UR+k}')

    def after_ri0(self):
        p = self.p
        load_table(p, 'GI', 4, aGI, 'a', vTw, sTB, sT)
        load_table(p, 'RF1', 4, aRF1, 'a', vTc, sTB, sT)
        load_table(p, 'RF2', 1, aRF2, 'a', vTc, sTB, sT)
        load_table(p, 'RFN', 1, aRFN, 'a', vTc, sTB, sT)
        load_table(p, 'TRF', 2, TRF, 'v', vTc, sTB, sT)
        a = RD + 12
        p(f'''v_and_b32 v{a}, 15, v0
              v_bfe_u32 v{a+1}, v0, 4, 2
              v_lshl_add_u32 v{a}, v{a+1}, 6, v{a}
              v_lshlrev_b32 v{a+1}, 1, v{a}
              v_lshlrev_b32 v{a+2}, 2, v{a}
              s_mov_b32 s{sT}, {SSC:#x}''')
        for k in range(8):
            dd = 256 * (k // 4) + 16 * (k % 4)
            p(f'buffer_load_ushort v{DSK+k}, v{a+1}, s[{sDS}:{sDS+3}], 0 offen offset:{dd*2}')
            p(f'buffer_load_dword v{YSC+k}, v{a+2}, s[{sWS}:{sWS+3}], s{sT} offen offset:{dd*4}')
        p(f'''v_lshrrev_b32 v{a}, 3, v0
              v_mul_u32_u24 v{a}, 144, v{a}
              v_and_b32 v{a+1}, 7, v0
              v_lshl_add_u32 v{a}, v{a+1}, 4, v{a}
              ds_write_b128 v{a}, v[{KF}:{KF+3}] offset:{L_KST}
              ds_write_b128 v{a}, v[{KF+4}:{KF+7}] offset:{L_KST+4608}
              s_barrier''')
        self.cb_forward(L_KST, KF)
        for k in range(8):
            p(f'v_lshlrev_b32 v{DSK+k}, 16, v{DSK+k}')
            p(f'v_mul_f32 v{YSC+k}, 0x41800000, v{YSC+k}')

    def build(self, name):
        p = self.p
        self.prologue(name)
        phases = [
            lambda: (self.phase_ca(0, 1, 2, 3, True), self.stamp(), self.prefetch_after_ca0()),
            lambda: (self.phase_ri(0, 2, 3, 4), self.after_ri0()),
            lambda: self.phase_cb(0, 3, 4, 5),
            lambda: self.phase_rf(4, 5, 6),
            lambda: self.phase_ca(1, 5, 6, 7, False),
            lambda: (self.phase_ri(1, 6, 7, 8), self.pre_final()),
            lambda: self.phase_cb(1, 7, 8, None),
            lambda: self.phase_final(8),
        ]
        for i, ph in enumerate(phases):
            ph()
            if i < 7: self.stamp()
            if self.stop_after is not None and i + 2 == self.stop_after: break
        self.dump_stamps()
        p('s_endpgm')
        p.label('main_exit')
        p('s_endpgm')
        return p
```

```python
from common import *

PREP_LDS = 36864
PREP_GRID = 648

def lam_from(p, sid, dst, tmp):
    p(f'''s_and_b32 s{dst}, s{sid}, 7
          s_lshl_b32 s{dst}, s{dst}, 5
          s_lshr_b32 s{tmp}, s{sid}, 3
          s_add_u32 s{dst}, s{dst}, s{tmp}''')

def row_base(p, lam, dst, t0, t1):
    p(f'''s_lshr_b32 s{t0}, s{lam}, 6
          s_lshl_b32 s{t0}, s{t0}, 1
          s_and_b32 s{t1}, s{lam}, 1
          s_add_u32 s{t0}, s{t0}, s{t1}
          s_lshl_b32 s{t0}, s{t0}, 8
          s_and_b32 s{t1}, s{lam}, 63
          s_lshr_b32 s{t1}, s{t1}, 1
          s_add_u32 s{dst}, s{t0}, s{t1}''')

def role_r1(p):
    p.label('prep_r1')
    p('''s_load_dwordx2 s[4:5], s[0:1], 0
         s_load_dwordx2 s[6:7], s[0:1], 112
         s_sub_u32 s24, s2, 256''')
    lam_from(p, 24, 25, 26)
    row_base(p, 25, 27, 26, 28)
    p('''v_and_b32 v1, 63, v0
         v_lshrrev_b32 v2, 6, v0
         v_readfirstlane_b32 s29, v2
         v_lshlrev_b32 v3, 4, v1
         s_waitcnt lgkmcnt(0)''')
    srd(p, 8, 4, 0x200000)
    srd(p, 12, 6, WS_BYTES)
    table_srd(p, 16, 'prep_r1_pc')
    p('''s_lshl_b32 s30, s29, 6
         s_add_u32 s30, s30, s27
         s_lshl_b32 s30, s30, 10
         s_add_u32 s31, s30, 0x8000
         buffer_load_dwordx4 v[8:11], v3, s[8:11], s30 offen
         buffer_load_dwordx4 v[12:15], v3, s[8:11], s31 offen''')
    RF1, RF2, RFN, TRF = 64, 80, 84, 88
    load_table(p, 'RF1', 4, RF1, 'v', 3, 16, 32)
    load_table(p, 'RF2', 1, RF2, 'v', 3, 16, 32)
    load_table(p, 'RFN', 1, RFN, 'v', 3, 16, 32)
    load_table(p, 'TRF', 2, TRF, 'v', 3, 16, 32)
    p(f'''v_lshlrev_b32 v4, 4, v0
          v_mov_b32 v96, -1
          v_mov_b32 v97, -1
          v_mov_b32 v98, -1
          v_mov_b32 v99, -1
          s_lshl_b32 s33, s25, 13
          s_add_u32 s34, s33, {E(2):#x}
          s_add_u32 s35, s34, 0x1000
          buffer_store_dwordx4 v[96:99], v4, s[12:15], s34 offen
          buffer_store_dwordx4 v[96:99], v4, s[12:15], s35 offen''')
    p('''s_lshl_b32 s36, s29, 11
         s_add_u32 s36, s36, 0x4000
         v_add_u32 v5, s36, v3
         v_lshlrev_b32 v6, 3, v1
         v_add_u32 v6, s36, v6
         ds_write_b128 v5, v[8:11]
         ds_write_b128 v5, v[12:15] offset:1024''')
    for rho in range(2):
        for t in range(2):
            p(f'ds_read_b64_tr_b16 v[{16+4*rho+2*t}:{17+4*rho+2*t}], v6 offset:{1024*rho+512*t}')
    X = 24
    for rho in range(2):
        for k in range(4):
            src = 16 + 4 * rho + k
            p(f'v_lshlrev_b32 v{X+8*rho+2*k}, 16, v{src}')
            p(f'v_and_b32 v{X+8*rho+2*k+1}, 0xffff0000, v{src}')
    p('s_mov_b32 s37, 0x07060302')
    for k in range(8): p(f'v_perm_b32 v{8+k}, v{X+8+k}, v{X+k}, s37')
    p(f'''s_lshl_b32 s38, s25, 13
          s_lshl_b32 s39, s29, 11
          s_add_u32 s38, s38, s39
          s_add_u32 s38, s38, {X0L:#x}
          buffer_store_dwordx4 v[8:11], v3, s[12:15], s38 offen
          buffer_store_dwordx4 v[12:15], v3, s[12:15], s38 offen offset:1024''')
    U = 40
    layernorm(p, X, U, 16, 40)
    p('s_mov_b64 s[42:43], 1')
    R = dict(A=16, D=96, B=24, X=40, N=56, O=8, T=16, RF1=RF1, RF2=RF2, RFN=RFN, TRF=TRF, m0=42)
    R['D'] = 92 + 4
    rfwd_dft(p, U, R, 'v')
    p('''v_and_b32 v2, 15, v1
         v_lshrrev_b32 v3, 4, v1
         v_lshl_add_u32 v2, v3, 6, v2
         v_mul_u32_u24 v2, 48, v2
         s_lshl_b32 s44, s29, 3
         v_add_u32 v2, s44, v2''')
    for t in range(2):
        for e in range(2):
            p(f'ds_write_b64 v2, v[{8+4*t+2*e}:{9+4*t+2*e}] offset:{768*t+1536*e}')
    p('''v_lshrrev_b32 v2, 1, v0
         v_mul_u32_u24 v2, 48, v2
         v_and_b32 v3, 1, v0
         v_lshl_add_u32 v2, v3, 4, v2
         s_barrier
         ds_read_b128 v[16:19], v2
         ds_read_b128 v[20:23], v2 offset:6144''')
    p(f'''s_add_u32 s34, s33, {E(1):#x}
          s_add_u32 s35, s34, 0x1000
          buffer_store_dwordx4 v[16:19], v4, s[12:15], s34 offen
          buffer_store_dwordx4 v[20:23], v4, s[12:15], s35 offen
          s_endpgm''')

def wave_allreduce2(p, A, B, T):
    p(f'''v_permlane32_swap_b32 v{A}, v{B}
          v_add_f32 v{A}, v{A}, v{B}
          v_mov_b32 v{T}, v{A}
          v_permlane16_swap_b32 v{A}, v{T}
          v_add_f32 v{A}, v{A}, v{T}
          v_add_f32 v{A}, v{A}, v{A} row_ror:8
          v_add_f32 v{A}, v{A}, v{A} row_ror:4
          v_add_f32 v{A}, v{A}, v{A} row_ror:2
          v_add_f32 v{A}, v{A}, v{A} row_ror:1
          v_mov_b32 v{B}, v{A}
          v_permlane32_swap_b32 v{A}, v{B}''')

def role_k(p):
    p.label('prep_k')
    p('''s_load_dwordx4 s[4:7], s[0:1], 32
         s_load_dwordx4 s[8:11], s[0:1], 48
         s_load_dwordx4 s[12:15], s[0:1], 64
         s_load_dwordx2 s[16:17], s[0:1], 80
         s_load_dwordx2 s[18:19], s[0:1], 112
         v_and_b32 v1, 63, v0
         v_lshrrev_b32 v2, 6, v0
         v_readfirstlane_b32 s29, v2
         s_waitcnt lgkmcnt(0)''')
    p('s_mov_b32 s60, s29')
    for dst, src in ((20, 4), (24, 6), (28, 8), (32, 10), (36, 12), (40, 14)): srd(p, dst, src, 0x20000)
    srd(p, 44, 16, 1024)
    srd(p, 48, 18, WS_BYTES)
    p('''s_lshr_b32 s61, s60, 1
         s_lshl_b32 s62, s2, 1
         s_add_u32 s62, s62, s61
         s_and_b32 s63, s60, 1
         s_lshl_b32 s63, s63, 6
         s_lshl_b32 s64, s62, 7
         s_add_u32 s64, s64, s63
         s_lshl_b32 s64, s64, 1
         v_lshlrev_b32 v3, 1, v1
         s_lshl_b32 s65, s62, 1
         v_mov_b32 v4, 0''')
    for i, sr in enumerate((20, 24, 28, 32, 36, 40)):
        p(f'buffer_load_ushort v{8+i}, v3, s[{sr}:{sr+3}], s64 offen')
    p('buffer_load_ushort v14, v4, s[44:47], s65 offen')
    for i in range(7): p(f'v_lshlrev_b32 v{8+i}, 16, v{8+i}')
    AR, AI, BR, BI, CR, CI, DT = 8, 9, 10, 11, 12, 13, 14
    p(f'''s_mov_b32 s66, 0x3fb8aa3b
          s_mov_b32 s67, 0x3e22f983
          v_mul_f32 v{DT}, s66, v{DT}
          v_exp_f32 v{DT}, v{DT}''')
    rbf(p, DT)
    p(f'''v_mul_f32 v{AR}, v{DT}, v{AR}
          v_mul_f32 v{AI}, v{DT}, v{AI}
          v_mul_f32 v{BR}, v{DT}, v{BR}
          v_mul_f32 v{BI}, v{DT}, v{BI}
          v_mul_f32 v16, v{CR}, v{BR}
          v_mul_f32 v17, v{CR}, v{BI}
          v_fma_f32 v16, -v{CI}, v{BI}, v16
          v_fma_f32 v17, v{CI}, v{BR}, v17
          v_and_b32 v18, 0x7fffffff, v16
          v_and_b32 v19, 0x7fffffff, v17
          v_add_f32 v18, v18, v19
          v_mov_b32 v19, v16''')
    wave_allreduce2(p, 18, 19, 20)
    p(f'''s_mov_b32 s68, 0x0da24260
          v_max_f32 v18, s68, v18
          v_rcp_f32 v20, v18
          v_mul_f32 v16, v16, v20
          v_mul_f32 v17, v17, v20
          v_mul_f32 v19, v19, v20''')
    p(f'''v_mul_f32 v21, s66, v{AR}
          v_mul_f32 v26, s67, v{AI}
          v_exp_f32 v27, v21
          v_fract_f32 v28, v26
          v_cos_f32 v22, v28
          v_sin_f32 v23, v28
          v_mul_f32 v22, v27, v22
          v_mul_f32 v23, v27, v23
          v_mul_f32 v21, 0x42000000, v21
          v_mul_f32 v26, 0x42000000, v26
          v_exp_f32 v27, v21
          v_fract_f32 v28, v26
          v_cos_f32 v24, v28
          v_sin_f32 v25, v28
          v_mul_f32 v24, v27, v24
          v_mul_f32 v25, v27, v25''')
    WSTR = 8704
    p(f'''s_mul_i32 s69, s60, {WSTR}
          v_lshlrev_b32 v5, 2, v1
          v_add_u32 v5, s69, v5
          v_and_b32 v6, 15, v1
          v_lshrrev_b32 v7, 4, v1
          v_mul_u32_u24 v30, 272, v6
          v_lshl_add_u32 v30, v7, 4, v30
          v_add_u32 v30, s69, v30''')
    def cstep(cur, w, tmp):
        p(f'v_pk_mul_f32 v[{tmp}:{tmp+1}], v[{cur}:{cur+1}], v[{w}:{w+1}] op_sel:[0,0] op_sel_hi:[0,1]')
        p(f'v_pk_fma_f32 v[{cur}:{cur+1}], v[{cur}:{cur+1}], v[{w}:{w+1}], v[{tmp}:{tmp+1}] op_sel:[1,1,0] op_sel_hi:[1,0,1] neg_lo:[1,0,0]')
    p('v_mov_b32 v32, v22\nv_mov_b32 v33, v23')
    for lo in range(32):
        p(f'v_cvt_pk_f16_f32 v{36+lo%4}, v32, -v33')
        p(f'ds_write_b32 v5, v{36+lo%4} offset:{lo*272}')
        if lo < 31: cstep(32, 22, 34)
    QB = 64
    for t in range(2):
        for ks in range(4):
            p(f'ds_read_b128 v[{QB+16*t+4*ks}:{QB+16*t+4*ks+3}], v30 offset:{t*4352+ks*64}')
    DD = 96 - 0
    PA = 40
    p('v_mov_b32 v32, v16\nv_mov_b32 v33, v17')
    for chunk in range(2):
        for hh in range(32):
            p(f'v_cvt_pk_f16_f32 v{36+hh%4}, v32, v33')
            p(f'ds_write_b32 v5, v{36+hh%4} offset:{hh*272}')
            if not (chunk == 1 and hh == 31): cstep(32, 24, 34)
        for m in range(2):
            mt = 2 * chunk + m
            for ks in range(4):
                p(f'ds_read_b128 v[{PA+4*ks}:{PA+4*ks+3}], v30 offset:{m*4352+ks*64}')
            for ks in range(4):
                for t in range(2):
                    d = DD + 8 * mt + 4 * t
                    mfma(p, d, PA + 4 * ks, QB + 16 * t + 4 * ks, None if ks == 0 else d)
    p(f'''v_lshl_add_u32 v6, v7, 7, v6
          v_add_u32 v6, 1, v6
          v_lshlrev_b32 v6, 2, v6
          v_add_u32 v6, s69, v6''')
    for mt in range(4):
        for t in range(2):
            for r in range(4):
                p(f'ds_write_b32 v6, v{DD+8*mt+4*t+r} offset:{(512*mt+32*r+16*t)*4}')
    p(f'''v_mov_b32 v7, s69
          ds_write_b32 v7, v19
          ds_write_b32 v7, v18 offset:8200
          s_barrier''')
    p('''v_lshrrev_b32 v2, 3, v0
         v_and_b32 v3, 7, v0
         v_lshl_add_u32 v2, v3, 8, v2
         v_mov_b32 v4, 0''')
    p(f'''ds_read_b32 v40, v4 offset:8200
          ds_read_b32 v41, v4 offset:{WSTR+8200}
          ds_read_b32 v42, v4 offset:{2*WSTR+8200}
          ds_read_b32 v43, v4 offset:{3*WSTR+8200}''')
    for jj in range(8):
        p(f'v_add_u32 v{8+jj}, {32*jj}, v2')
        p(f'v_cvt_f32_u32 v{8+jj}, v{8+jj}')
    for q in range(4): p(f'v_cvt_pk_bf16_f32 v{16+q}, v{8+2*q}, v{9+2*q}')
    for q in range(4):
        p(f'v_lshlrev_b32 v{8+2*q}, 16, v{16+q}')
        p(f'v_and_b32 v{9+2*q}, 0xffff0000, v{16+q}')
    for jj in range(8): p(f'v_cvt_u32_f32 v{8+jj}, v{8+jj}')
    for jj in range(8): p(f'v_lshlrev_b32 v{8+jj}, 2, v{8+jj}')
    for wv in range(4):
        for jj in range(8):
            p(f'ds_read_b32 v{64+8*wv+jj}, v{8+jj} offset:{wv*WSTR}')
    p('''v_add_f32 v44, v40, v41
         v_add_f32 v45, v42, v43
         v_rcp_f32 v46, v44
         v_rcp_f32 v47, v45
         v_mul_f32 v40, v40, v46
         v_mul_f32 v41, v41, v46
         v_mul_f32 v42, v42, v47
         v_mul_f32 v43, v43, v47''')
    for ch in range(2):
        for jj in range(8):
            a, b = 64 + 16 * ch + jj, 64 + 16 * ch + 8 + jj
            p(f'v_mul_f32 v{a}, v{a}, v{40+2*ch}')
            p(f'v_fmac_f32 v{a}, v{b}, v{41+2*ch}')
        for q in range(4):
            p(f'v_cvt_pk_f16_f32 v{48+4*ch+q}, v{64+16*ch+2*q}, v{64+16*ch+2*q+1}')
    p(f'''v_lshlrev_b32 v4, 4, v0
          s_lshl_b32 s70, s2, 13
          s_add_u32 s70, s70, {KN:#x}
          s_add_u32 s71, s70, 0x1000
          buffer_store_dwordx4 v[48:51], v4, s[48:51], s70 offen
          buffer_store_dwordx4 v[52:55], v4, s[48:51], s71 offen
          s_lshl_b32 s72, s2, 3
          s_add_u32 s72, s72, {SSC:#x}
          v_mov_b32 v2, 0
          v_cmp_eq_u32 vcc, 0, v0
          s_and_saveexec_b64 s[74:75], vcc
          s_cbranch_execz prep_k_end
          buffer_store_dwordx2 v[44:45], v2, s[48:51], s72 offen''')
    p.label('prep_k_end')
    p('s_endpgm')

def role_w(p):
    p.label('prep_w')
    p('''s_load_dwordx4 s[4:7], s[0:1], 8
         s_load_dwordx2 s[8:9], s[0:1], 112
         s_sub_u32 s24, s2, 512
         s_waitcnt lgkmcnt(0)''')
    WB = 2048 * 257 * 2
    srd(p, 12, 4, WB); srd(p, 16, 6, WB); srd(p, 20, 8, WS_BYTES)
    p('''s_cmp_ge_u32 s24, 128
         s_cbranch_scc1 prep_wsp''')
    p('''s_and_b32 s25, s24, 7
         s_lshr_b32 s26, s25, 1
         s_and_b32 s27, s25, 1
         s_lshr_b32 s28, s24, 3
         v_and_b32 v1, 15, v0
         v_lshrrev_b32 v2, 4, v0
         s_lshl_b32 s29, s26, 4
         s_lshl_b32 s30, s27, 10
         s_add_u32 s29, s29, s30
         v_add_u32 v3, s29, v2
         v_mul_u32_u24 v3, 514, v3
         s_lshl_b32 s31, s28, 4
         v_add_u32 v4, s31, v1
         v_lshl_add_u32 v3, v4, 1, v3''')
    for m in range(16):
        p(f's_mov_b32 s32, {m*64*514}')
        p(f'buffer_load_ushort v{8+m}, v3, s[12:15], s32 offen')
        p(f'buffer_load_ushort v{24+m}, v3, s[16:19], s32 offen')
    p('s_mov_b32 s33, 0x42000000')
    for m in range(16):
        p(f'v_lshlrev_b32 v{8+m}, 16, v{8+m}')
        p(f'v_lshlrev_b32 v{24+m}, 16, v{24+m}')
        p(f'v_mul_f32 v{8+m}, s33, v{8+m}')
        p(f'v_mul_f32 v{24+m}, s33, v{24+m}')
        p(f'v_cvt_pk_f16_f32 v{40+m}, v{8+m}, v{24+m}')
    p(f'''v_lshlrev_b32 v5, 13, v4
          v_lshl_add_u32 v5, v2, 4, v5
          s_lshl_b32 s34, s26, 11
          s_lshl_b32 s35, s27, 10
          s_add_u32 s34, s34, s35
          s_add_u32 s34, s34, {WT:#x}
          v_cmp_ne_u32 vcc, 0, v4
          s_and_saveexec_b64 s[36:37], vcc
          s_cbranch_execz prep_w_end''')
    for gp in range(4):
        p(f'buffer_store_dwordx4 v[{40+4*gp}:{43+4*gp}], v5, s[20:23], s34 offen offset:{gp*256}')
    p.label('prep_w_end')
    p('s_endpgm')
    p.label('prep_wsp')
    p('''s_sub_u32 s25, s24, 128
         s_lshr_b32 s26, s25, 1
         s_and_b32 s27, s25, 1
         v_and_b32 v1, 15, v0
         v_lshrrev_b32 v2, 4, v0
         s_lshl_b32 s29, s26, 4
         s_lshl_b32 s30, s27, 10
         s_add_u32 s29, s29, s30
         v_lshl_add_u32 v3, v2, 6, v1
         v_add_u32 v3, s29, v3
         v_sub_u32 v4, 0x800, v3
         v_and_b32 v4, 0x7ff, v4
         v_mul_u32_u24 v3, 514, v3
         v_mul_u32_u24 v4, 514, v4
         buffer_load_ushort v8, v3, s[12:15], 0 offen
         buffer_load_ushort v9, v3, s[16:19], 0 offen
         buffer_load_ushort v10, v3, s[12:15], 0 offen offset:512
         buffer_load_ushort v11, v3, s[16:19], 0 offen offset:512
         buffer_load_ushort v12, v4, s[12:15], 0 offen
         buffer_load_ushort v13, v4, s[16:19], 0 offen
         buffer_load_ushort v14, v4, s[12:15], 0 offen offset:512
         buffer_load_ushort v15, v4, s[16:19], 0 offen offset:512''')
    for i in range(8): p(f'v_lshlrev_b32 v{8+i}, 16, v{8+i}')
    p('''v_add_f32 v16, v8, v12
         v_sub_f32 v17, v9, v13
         v_add_f32 v18, v10, v14
         v_sub_f32 v19, v11, v15
         v_add_f32 v20, v16, v18
         v_add_f32 v21, v17, v19
         v_sub_f32 v22, v16, v18
         v_sub_f32 v23, v17, v19
         v_mul_f32 v20, 4.0, v20
         v_mul_f32 v21, 4.0, v21
         v_mul_f32 v22, 4.0, v22
         v_mul_f32 v23, 4.0, v23
         v_cvt_pk_f16_f32 v24, v20, v21
         v_cvt_pk_f16_f32 v25, v22, v23''')
    p(f'''v_lshrrev_b32 v5, 2, v2
          v_lshl_add_u32 v5, v5, 4, v1
          v_lshlrev_b32 v5, 4, v5
          v_and_b32 v6, 3, v2
          v_lshl_add_u32 v5, v6, 2, v5
          s_lshl_b32 s34, s26, 11
          s_lshl_b32 s35, s27, 10
          s_add_u32 s34, s34, s35
          s_add_u32 s36, s34, {WT:#x}
          s_add_u32 s37, s34, {WQ:#x}
          buffer_store_dword v24, v5, s[20:23], s36 offen
          buffer_store_dword v25, v5, s[20:23], s37 offen
          s_endpgm''')

def gen_prep(name):
    p = Prog()
    p(f'''s_cmp_ge_u32 s2, {PREP_GRID}
          s_cbranch_scc1 prep_exit
          s_cmp_ge_u32 s2, 512
          s_cbranch_scc1 prep_w
          s_cmp_ge_u32 s2, 256
          s_cbranch_scc1 prep_r1''')
    role_k(p)
    role_r1(p)
    role_w(p)
    p.label('prep_exit')
    p('s_endpgm')
    return p
```

```python
import numpy as np
L = np.arange(64); I = L % 16; G = L // 16
def pk(lo, hi):
    lo = np.asarray(lo, np.float64).astype(np.float32).astype(np.float16).view(np.uint16).astype(np.uint32)
    hi = np.asarray(hi, np.float64).astype(np.float32).astype(np.float16).view(np.uint16).astype(np.uint32)
    return lo | (hi << 16)
def cs(num, den):
    th = 2 * np.pi * (np.asarray(num, np.float64) % den) / den
    return np.cos(th), np.sin(th)
def quad(regs):
    assert len(regs) == 4
    return np.stack(regs, 1).astype(np.uint32)

def F64(w):
    out = []
    for o in range(2):
        for ks in range(4):
            regs = []
            for q in range(4):
                c, s = cs((16 * ks + 4 * G + q) * (16 * w + I), 64)
                regs.append(pk(c / 8, s / 8) if o == 0 else pk(-s / 8, c / 8))
            out.append(quad(regs))
    return out
def F32C():
    out = []
    for mt in range(4):
        ksO, e = mt // 2, mt % 2
        gp, rp = I // 4, I % 4
        k2 = 16 * ksO + 4 * gp + 2 * e + rp // 2
        cpart = rp % 2
        for nt in range(2):
            regs = []
            for r in range(4):
                c, s = cs((16 * nt + 4 * G + r) * k2, 32)
                regs.append(np.where(cpart == 0, pk(c / 8, s / 8), pk(-s / 8, c / 8)))
            out.append(quad(regs))
    return out
def TW(w, shift4):
    out = []
    for nt in range(2):
        regs = []
        for r in range(4):
            c, s = cs((16 * nt + 4 * G + r) * (4 * (16 * w + I) + shift4), 8192)
            regs.append(pk(c, -s))
        out.append(quad(regs))
    return out
def GF(w):
    out = []
    for o in range(2):
        for ks in range(2):
            regs = []
            for q in range(4):
                n1 = 32 * ks + 8 * G + 2 * q
                c0, s0 = cs(n1 * (4 * (16 * w + I) + 1), 256)
                c1, s1 = cs((n1 + 1) * (4 * (16 * w + I) + 1), 256)
                regs.append(pk(c0 / 8, c1 / 8) if o == 0 else pk(-s0 / 8, -s1 / 8))
            out.append(quad(regs))
    return out
def GI(w):
    out = []
    for ks in range(4):
        regs = []
        for q in range(4):
            c, s = cs((16 * w + I) * (4 * (16 * ks + 4 * G + q) + 1), 256)
            regs.append(pk(c, s))
        out.append(quad(regs))
    return out
def RF1():
    out = []
    for t in range(2):
        for o in range(2):
            regs = []
            for q in range(4):
                n1 = 16 * (q // 2) + 4 * G + 2 * (q % 2)
                c0, s0 = cs(n1 * (16 * t + I), 32)
                c1, s1 = cs((n1 + 1) * (16 * t + I), 32)
                regs.append(pk(c0 / 4, c1 / 4) if o == 0 else pk(-s0 / 4, -s1 / 4))
            out.append(quad(regs))
    return out
def RF2():
    k2 = I // 2; cpart = I % 2
    regs = []
    for r in range(4):
        c, s = cs((4 * G + r) * k2, 16)
        regs.append(np.where(cpart == 0, pk(c / 4, s / 4), pk(-s / 4, c / 4)))
    return [quad(regs)]
def RFN():
    regs = []
    for r in range(4):
        v = np.where(I == 1, (-1.0) ** r / 4, 0.0)
        regs.append(pk(v, 0 * v))
    return [quad(regs)]
def RI2():
    regs = []
    for o in range(2):
        for e in range(2):
            c, s = cs((2 * G + e) * I, 16)
            regs.append(pk(c / 4, -s / 4) if o == 0 else pk(s / 4, c / 4))
    return [quad(regs)]
def RI1():
    out = []
    for tp in range(2):
        for t in range(2):
            regs = []
            for r in range(4):
                c, s = cs((16 * t + 4 * G + r) * (16 * tp + I), 32)
                regs.append(pk(c / 64, -s / 64))
            out.append(quad(regs))
    return out
def TRF():
    out = []
    for t in range(2):
        regs = []
        for r in range(4):
            c, s = cs((4 * G + r) * (16 * t + I), 512)
            regs.append(pk(c, -s))
        out.append(quad(regs))
    return out
def TRI():
    out = []
    for t in range(2):
        regs = []
        for r in range(4):
            c, s = cs((16 * t + 4 * G + r) * I, 512)
            regs.append(pk(c, s))
        out.append(quad(regs))
    return out

def build():
    common = [('F32C', F32C()), ('RF1', RF1()), ('RF2', RF2()), ('RFN', RFN()), ('TRF', TRF()), ('RI2', RI2()), ('RI1', RI1()), ('TRI', TRI())]
    off = {}; blob = []; pos = 0
    for n, qs in common:
        off[n] = pos
        for q in qs: blob.append(q.reshape(-1)); pos += 1024
    off['WBASE'] = pos
    per = lambda w: [('F64', F64(w)), ('TA', TW(w, 0)), ('GF', GF(w)), ('GI', GI(w)), ('TB', TW(w, 1))]
    for w in range(4):
        p0 = pos
        for n, qs in per(w):
            if w == 0: off[n] = pos
            for q in qs: blob.append(q.reshape(-1)); pos += 1024
        off['WSTRIDE'] = pos - p0
    off['SIZE'] = pos
    return np.concatenate(blob), off

if __name__ == '__main__':
    b, o = build(); print(o, b.nbytes)
```

```python
import sys
sys.path.insert(0, 'gen')
from common import *
from asmgen import finalize
import gen_prep, gen_main

NAME = 'interleave_layers__spectral_gfnet__ssm_conv_s4__prompt'
def header():
    src = open(f'cdna_kernels/{NAME}.s.ref').read().split('\n')
    return [l for l in src if l.startswith(';') and ('offset' in l or 'Kernarg' in l)]
def kd(name, vgpr, accum, sgpr):
    return ['.p2align 6', f'.amdhsa_kernel {name}', f'  .amdhsa_next_free_vgpr {vgpr}', f'  .amdhsa_next_free_sgpr {sgpr}',
            f'  .amdhsa_accum_offset {accum}', '  .amdhsa_group_segment_fixed_size 0', '  .amdhsa_kernarg_size 120',
            '  .amdhsa_user_sgpr_count 2', '  .amdhsa_user_sgpr_kernarg_segment_ptr 1', '  .amdhsa_system_sgpr_workgroup_id_x 1',
            '  .amdhsa_float_denorm_mode_32 3', '.end_amdhsa_kernel']
def build(path, stop_after=None, dbg=None):
    main = NAME + '_kernel'
    gen_prep.DBG = bool(dbg)
    out = header()
    out.append(f'; @launch kernel=prep_kernel grid=({gen_prep.PREP_GRID},1,1) block=(256,1,1) lds={gen_prep.PREP_LDS}')
    out.append(f'; @launch kernel={main} grid=(256,1,1) block=(256,1,1) lds={gen_main.MAIN_LDS}')
    out += ['.amdgcn_target "amdgcn-amd-amdhsa--gfx950"', '.text']
    st = {}
    for nm, prog in (('prep_kernel', gen_prep.gen_prep('prep_kernel')), (main, gen_main.Gen(stop_after, dbg).build(main))):
        out += [f'.globl {nm}', '.p2align 8', f'.type {nm},@function', f'{nm}:']
        s = {}
        out += finalize(prog.items, s)
        st[nm] = s
    out += emit_tables()
    out.append('.section .rodata,"a"')
    out += kd('prep_kernel', 128, 128, 96)
    out += kd(main, 256 + gen_main.N_AGPR, 256, 96)
    open(path, 'w').write('\n'.join(out) + '\n')
    return st
if __name__ == '__main__':
    path = sys.argv[1] if len(sys.argv) > 1 else f'cdna_kernels/{NAME}.s'
    stop = int(sys.argv[2]) if len(sys.argv) > 2 and sys.argv[2] != '-' else None
    dbg = sys.argv[3] if len(sys.argv) > 3 else None
    print(build(path, stop, dbg))
```

```python
from common import *
from gen_prep import lam_from, row_base

L_INA = L_INB = L_ZS = L_CS = 0
L_MID = L_KST = L_PRE = 12288
L_REV = L_US = L_XS = 29696
MAIN_LDS = 41984
vGA, vLin, vCO, vSt, vLAw, vLAr, vMw, vLBw, vLBr, vZ0, vZ1, vUw, vCr, vSGN, vTc, vTw = range(1, 17)
SENT = 20
TA_, TB_, TRF, TRI, WW, WQr, KF, DSK, YSC, XR, UR = 24, 32, 40, 48, 56, 64, 72, 88, 96, 104, 120
RA, RB, RC, RD = 136, 168, 200, 232
aF64, aF32, aGF, aGI, aRF1, aRF2, aRFN, aRI2, aRI1 = 0, 32, 64, 80, 96, 112, 116, 120, 124
N_AGPR = 140
sWS, sOUT, sTB, sDS = 8, 12, 16, 20
sLAM, sW, sBUD, sRB = 24, 25, 26, 27
sI0, sI1, sO0, sO1, sC0, sC1, sT = 28, 29, 30, 31, 32, 33, 34
sM0 = 40
POLL_BUDGET = 40000

class Gen:
    def __init__(self, stop_after=None, dbg=None):
        self.p = Prog(); self.n = 0; self.stop_after = stop_after; self.dbg = dbg; self.ns = 0

    def stamp(self):
        if not self.dbg: return
        self.p(f'''s_memtime s[62:63]
                   s_waitcnt lgkmcnt(0)
                   s_mov_b32 s{64 + self.ns}, s62''')
        self.ns += 1

    def dump_stamps(self):
        if not self.dbg: return
        p = self.p
        wg = self.dbg if isinstance(self.dbg, int) and self.dbg is not True else 0
        p(f'''s_memrealtime s[62:63]
              s_load_dwordx2 s[4:5], s[0:1], 104
              s_waitcnt lgkmcnt(0)
              s_mov_b32 s{64 + self.ns}, s62''')
        self.ns += 1
        srd(p, 44, 4, 256 if self.dbg != 'all' else 256)
        done = self.uid('nodump')
        if self.dbg == 'rt':
            p(f'''s_cmp_lg_u32 s2, 9
                  s_cbranch_scc1 {done}
                  s_mov_b64 exec, 1
                  v_mov_b32 v{RD}, 0
                  s_mov_b32 s{sT}, {0x1790000 + 9 * 8:#x}
                  buffer_load_dwordx2 v[{RA}:{RA+1}], v{RD}, s[{sWS}:{sWS+3}], s{sT} offen sc1
                  buffer_load_dwordx2 v[{RA+2}:{RA+3}], v{RD}, s[{sWS}:{sWS+3}], s{sT} offen offset:2048 sc1
                  s_add_u32 s{sT}, s{sT}, 4096
                  buffer_load_dwordx2 v[{RA+4}:{RA+5}], v{RD}, s[{sWS}:{sWS+3}], s{sT} offen sc1
                  s_mov_b32 s{sT}, {0x1790000 + 247 * 8:#x}
                  buffer_load_dwordx2 v[{RA+8}:{RA+9}], v{RD}, s[{sWS}:{sWS+3}], s{sT} offen sc1
                  buffer_load_dwordx2 v[{RA+10}:{RA+11}], v{RD}, s[{sWS}:{sWS+3}], s{sT} offen offset:2048 sc1
                  s_mov_b32 s{sT}, {0x1790000 + 640 * 8:#x}
                  buffer_load_dwordx2 v[{RA+12}:{RA+13}], v{RD}, s[{sWS}:{sWS+3}], s{sT} offen sc1
                  v_mov_b32 v{RA+6}, s61
                  v_mov_b32 v{RA+7}, s{64 + self.ns - 1}
                  v_mov_b32 v{RA+14}, s{64 + self.ns - 2}
                  v_mov_b32 v{RA+15}, s64
                  s_waitcnt vmcnt(0)
                  v_mov_b32 v{RA+16}, v{RA}''')
            for k in range(14): p(f'v_sub_u32 v{RA+k}, v{RA+k}, v{RA+16}')
            p(f'v_sub_u32 v{RA+14}, v{RA+14}, v{RA+15}')
            for k in range(15): p(f'buffer_store_dword v{RA+k}, v{RD}, s[44:47], 0 offen offset:{4*k}')
        elif self.dbg == 'all':
            p(f'''s_lshl_b32 s{sT}, s2, 7
                  s_add_u32 s{sT}, s{sT}, 0x1780000
                  s_mov_b32 s{64+self.ns}, s61''')
            self.ns += 1
            for k in range(self.ns): p(f'v_mov_b32 v{RA+k}, s{64+k}')
            p(f'''v_cmp_eq_u32 vcc, 0, v0
                  s_and_saveexec_b64 s[48:49], vcc
                  s_cbranch_execz {done}
                  v_mov_b32 v{RD}, 0''')
            for k in range(self.ns): p(f'buffer_store_dword v{RA+k}, v{RD}, s[{sWS}:{sWS+3}], s{sT} offen offset:{4*k}')
        else:
            for k in range(self.ns): p(f'v_mov_b32 v{RA+k}, s{64+k}')
            p(f'''s_cmp_lg_u32 s2, 9
                  s_cbranch_scc1 {done}
                  v_cmp_eq_u32 vcc, 0, v0
                  s_and_saveexec_b64 s[48:49], vcc
                  s_cbranch_execz {done}
                  v_mov_b32 v{RD}, 0''')
            for k in range(1, min(self.ns, 17)):
                p(f'v_sub_u32 v{RA+k}, v{RA+k}, v{RA}') if k < self.ns - 1 else None
            for k in range(1, min(self.ns, 17)):
                p(f'buffer_store_dword v{RA+k}, v{RD}, s[44:47], 0 offen offset:{4*(k-1)}')
        p.label(done)
        p('s_mov_b64 exec, -1')

    def uid(self, s):
        self.n += 1; return f'{s}_{self.n}'

    def set_in(self, x):
        self.p(f'''s_lshl_b32 s{sI0}, s{sLAM}, 5
                   s_add_u32 s{sI0}, s{sI0}, {E(x):#x}
                   s_add_u32 s{sI1}, s{sI0}, 0x100000''')
    def set_own(self, s0, s1, base):
        self.p(f'''s_lshl_b32 s{s0}, s{sLAM}, 13
                   s_add_u32 s{s0}, s{s0}, {base:#x}
                   s_add_u32 s{s1}, s{s0}, 0x1000''')

    def gather(self, G, poll=True):
        p = self.p
        if not poll:
            p(f'buffer_load_dwordx4 v[{G}:{G+3}], v{vGA}, s[{sWS}:{sWS+3}], s{sI0} offen')
            p(f'buffer_load_dwordx4 v[{G+4}:{G+7}], v{vGA}, s[{sWS}:{sWS+3}], s{sI1} offen')
            return
        lp, done = self.uid('poll'), self.uid('polldone')
        p('s_waitcnt vmcnt(0)')
        p.label(lp)
        p(f'''buffer_load_dwordx4 v[{G}:{G+3}], v{vGA}, s[{sWS}:{sWS+3}], s{sI0} offen sc1
              buffer_load_dwordx4 v[{G+4}:{G+7}], v{vGA}, s[{sWS}:{sWS+3}], s{sI1} offen sc1
              s_waitcnt vmcnt(0)
              v_max3_u32 v{G+8}, v{G}, v{G+1}, v{G+2}
              v_max3_u32 v{G+9}, v{G+3}, v{G+4}, v{G+5}
              v_max3_u32 v{G+8}, v{G+8}, v{G+6}, v{G+7}
              v_max_u32 v{G+8}, v{G+8}, v{G+9}
              v_cmp_eq_u32 vcc, -1, v{G+8}
              s_cbranch_vccz {done}
              s_cmp_eq_u32 s{sBUD}, 0
              s_cbranch_scc1 {done}
              s_sub_u32 s{sBUD}, s{sBUD}, 1
              s_branch {lp}''')
        p.label(done)
        self.stamp()

    def clear(self, x):
        if x is None: return
        self.set_own(sC0, sC1, E(x))
        self.p(f'''buffer_store_dwordx4 v[{SENT}:{SENT+3}], v{vLin}, s[{sWS}:{sWS+3}], s{sC0} offen sc1
                   buffer_store_dwordx4 v[{SENT}:{SENT+3}], v{vLin}, s[{sWS}:{sWS+3}], s{sC1} offen sc1''')

    def step2(self, D, Bop):
        for nt in range(2):
            for mt in range(4):
                mfma(self.p, D + 4 * mt, aF32 + 8 * mt + 4 * nt, Bop + 4 * nt, None if nt == 0 else D + 4 * mt, 'a', 'v')

    def d2_items(self, dst, D, tw):
        return [(dst + 4 * (mt // 2) + 2 * (mt % 2) + h, D + 4 * mt + 2 * h, D + 4 * mt + 2 * h + 1,
                 None if tw is None else tw + 4 * (mt // 2) + 2 * (mt % 2) + h) for mt in range(4) for h in range(2)]

    def phase_ca(self, L, xin, xout, xclr, first):
        p = self.p
        G = RD
        if not first:
            self.set_in(xin); self.gather(G)
        p(f'''ds_write_b128 v{vLAw}, v[{G}:{G+3}] offset:{L_INA}
              ds_write_b128 v{vLAw}, v[{G+4}:{G+7}] offset:{L_INA+128}''')
        self.clear(xclr)
        p('s_barrier')
        A = RA
        for nt in range(2):
            for ks in range(4):
                p(f'ds_read_b128 v[{A+16*nt+4*ks}:{A+16*nt+4*ks+3}], v{vLAr} offset:{L_INA+nt*4352+ks*64}')
        D1 = RB
        for nt in range(2):
            for ks in range(4):
                for o in range(2):
                    d = D1 + 8 * o + 4 * nt
                    mfma(p, d, A + 16 * nt + 4 * ks, aF64 + 16 * o + 4 * ks, None if ks == 0 else d, 'v', 'a')
        Y = RC
        items = [(Y + 4 * nt + r, D1 + 4 * nt + r, D1 + 8 + 4 * nt + r, TA_ + 4 * nt + r) for nt in range(2) for r in range(4)]
        cvt_cmul_block(p, items, RD + 12, 8)
        D2 = RB + 16
        self.step2(D2, Y)
        VC = RC + 8
        sp, join = self.uid('ca_sp'), self.uid('ca_join')
        p('s_waitcnt vmcnt(2)')
        p(f's_cmp_eq_u32 s{sLAM}, 0')
        p(f's_cbranch_scc1 {sp}')
        cvt_cmul_block(p, self.d2_items(VC, D2, WW), RD + 12, 8, conj=True)
        p(f's_branch {join}')
        p.label(sp)
        Z = RC + 16; ZR = RC + 24; T0 = RD + 12
        for (dst, re, im, _) in self.d2_items(Z, D2, None): p(f'v_cvt_pk_f16_f32 v{dst}, v{re}, v{im}')
        p(f'''v_and_b32 v{T0}, 15, v0
              v_bfe_u32 v{T0+1}, v0, 4, 2
              v_lshl_add_u32 v{T0}, v{T0+1}, 8, v{T0}
              s_lshl_b32 s{sT}, s{sW}, 4
              v_add_u32 v{T0}, s{sT}, v{T0}
              v_lshlrev_b32 v{T0+1}, 2, v{T0}''')
        for ks in range(2):
            for q in range(4):
                p(f'ds_write_b32 v{T0+1}, v{Z+4*ks+q} offset:{L_REV+ks*4096+q*256}')
        p('s_barrier')
        for ks in range(2):
            for q in range(4):
                p(f'''v_sub_u32 v{T0+2}, {2048-1024*ks-64*q}, v{T0}
                      v_and_b32 v{T0+2}, 0x7ff, v{T0+2}
                      v_lshlrev_b32 v{T0+2}, 2, v{T0+2}
                      ds_read_b32 v{ZR+4*ks+q}, v{T0+2} offset:{L_REV}''')
        for k in range(8): cmul(p, VC + k, Z + k, WW + k, conj=True)
        for k in range(8):
            p(f'v_pk_fma_f16 v{VC+k}, v{ZR+k}, v{WQr+k}, v{VC+k} op_sel:[0,0,0] op_sel_hi:[0,1,1] neg_hi:[0,1,0]')
            p(f'v_pk_fma_f16 v{VC+k}, v{ZR+k}, v{WQr+k}, v{VC+k} op_sel:[1,1,0] op_sel_hi:[1,0,1]')
        p.label(join)
        D3 = RB
        self.step2(D3, VC)
        cvt_cmul_block(p, self.d2_items(Y, D3, TA_), RD + 12, 8)
        for nt in range(2):
            for q in range(4):
                p(f'ds_write_b32 v{vMw}, v{Y+4*nt+q} offset:{L_MID+(16*nt+q)*272}')
        p('s_barrier')
        for nt in range(2):
            for ks in range(4):
                p(f'ds_read_b128 v[{A+16*nt+4*ks}:{A+16*nt+4*ks+3}], v{vLAr} offset:{L_MID+nt*4352+ks*64}')
        D4 = RB + 16
        for nt in range(2):
            for ks in range(4):
                for o in range(2):
                    d = D4 + 8 * o + 4 * nt
                    mfma(p, d, aF64 + 16 * o + 4 * ks, A + 16 * nt + 4 * ks, None if ks == 0 else d, 'a', 'v')
        O = RD
        for nt in range(2):
            for r in range(4):
                p(f'v_cvt_pk_f16_f32 v{O+4*nt+r}, v{D4+4*nt+r}, -v{D4+8+4*nt+r}')
        self.set_own(sO0, sO1, E(xout))
        p('s_waitcnt vmcnt(0)')
        for nt in range(2):
            p(f'buffer_store_dwordx4 v[{O+4*nt}:{O+4*nt+3}], v{vCO}, s[{sWS}:{sWS+3}], s{sO0} offen offset:{nt*1024} sc1')

    def cb_forward(self, lds_in, dstZ, tw2=None, conj=False):
        p = self.p
        A = RA
        for ch in range(2):
            for nt in range(2):
                for ks in range(2):
                    r = A + 16 * ch + 8 * nt + 4 * ks
                    p(f'ds_read_b128 v[{r}:{r+3}], v{vLBr} offset:{lds_in+ch*4608+nt*2304+ks*64}')
        D1 = RB
        for ch in range(2):
            for nt in range(2):
                for ks in range(2):
                    for o in range(2):
                        d = D1 + 16 * ch + 8 * o + 4 * nt
                        mfma(p, d, A + 16 * ch + 8 * nt + 4 * ks, aGF + 8 * o + 4 * ks, None if ks == 0 else d, 'v', 'a')
        Y = RC
        for ch in range(2):
            items = [(Y + 8 * ch + 4 * nt + r, D1 + 16 * ch + 4 * nt + r, D1 + 16 * ch + 8 + 4 * nt + r, TB_ + 4 * nt + r)
                     for nt in range(2) for r in range(4)]
            cvt_cmul_block(p, items, RD + 12, 8)
        D2 = RA
        for ch in range(2): self.step2(D2 + 16 * ch, Y + 8 * ch)
        for ch in range(2):
            if tw2 is None:
                for (dst, re, im, _) in self.d2_items(dstZ + 8 * ch, D2 + 16 * ch, None): p(f'v_cvt_pk_f16_f32 v{dst}, v{re}, v{im}')
            else:
                cvt_cmul_block(p, self.d2_items(dstZ + 8 * ch, D2 + 16 * ch, tw2 + 8 * ch), RD + 12, 8, conj=conj)

    def phase_cb(self, L, xin, xout, xclr):
        p = self.p
        G = RD
        self.set_in(xin); self.gather(G)
        p(f'''ds_write_b128 v{vLBw}, v[{G}:{G+3}] offset:{L_INB}
              ds_write_b128 v{vLBw}, v[{G+4}:{G+7}] offset:{L_INB+64}''')
        self.clear(xclr)
        p('s_barrier')
        VC = RC + 16
        self.cb_forward(L_INB, VC, KF, conj=True)
        D3 = RB
        for ch in range(2): self.step2(D3 + 16 * ch, VC + 8 * ch)
        Y = RC
        for ch in range(2):
            cvt_cmul_block(p, self.d2_items(Y + 8 * ch, D3 + 16 * ch, TB_), RD + 12, 8)
        for ch in range(2):
            for nt in range(2):
                for q in range(4):
                    p(f'ds_write_b32 v{vMw}, v{Y+8*ch+4*nt+q} offset:{L_MID+ch*8704+(16*nt+q)*272}')
        p('s_barrier')
        Bop = {0: RA, 1: RC}
        for ch in range(2):
            for nt in range(2):
                for ks in range(4):
                    r = Bop[ch] + 16 * nt + 4 * ks
                    p(f'ds_read_b128 v[{r}:{r+3}], v{vLAr} offset:{L_MID+ch*8704+nt*4352+ks*64}')
        D4 = RB
        for ch in range(2):
            for ks in range(4):
                for nt in range(2):
                    d = D4 + 8 * ch + 4 * nt
                    mfma(p, d, aGI + 4 * ks, Bop[ch] + 16 * nt + 4 * ks, None if ks == 0 else d, 'a', 'v')
        O = RD
        for nt in range(2):
            for ch in range(2):
                for hh in range(2):
                    d = D4 + 8 * ch + 4 * nt + 2 * hh
                    p(f'v_cvt_pk_f16_f32 v{O+4*nt+2*ch+hh}, v{d}, v{d+1}')
        self.set_own(sO0, sO1, E(xout))
        p('s_waitcnt vmcnt(0)')
        for nt in range(2):
            p(f'buffer_store_dwordx4 v[{O+4*nt}:{O+4*nt+3}], v{vCO}, s[{sWS}:{sWS+3}], s{sO0} offen offset:{nt*1024} sc1')

    def store_linear(self, G, xout):
        p = self.p
        self.set_own(sO0, sO1, E(xout))
        p('s_waitcnt vmcnt(0)')
        p(f'buffer_store_dwordx4 v[{G}:{G+3}], v{vLin}, s[{sWS}:{sWS+3}], s{sO0} offen sc1')
        p(f'buffer_store_dwordx4 v[{G+4}:{G+7}], v{vLin}, s[{sWS}:{sWS+3}], s{sO1} offen sc1')

    def phase_ri(self, L, xin, xout, xclr):
        p = self.p
        G = RD
        self.set_in(xin); self.gather(G)
        p(f'''ds_write_b128 v{vSt}, v[{G}:{G+3}] offset:{L_ZS}
              ds_write_b128 v{vSt}, v[{G+4}:{G+7}] offset:{L_ZS+6144}''')
        self.clear(xclr)
        p('s_barrier')
        A = RA; NY = RA + 8; CI = RA + 12
        assert L_ZS % 256 == 0
        zb = L_ZS // 256
        for rho in range(2):
            for t in range(2):
                r = A + 4 * rho + 2 * t
                p(f'ds_read2st64_b32 v[{r}:{r+1}], v{vZ0 if rho == 0 else vZ1} offset0:{zb+3*t} offset1:{zb+3*t+6}')
        p(f'''s_lshl_b32 s{sT}, s{sW}, 3
              v_mov_b32 v{NY+2}, s{sT}
              ds_read_b64 v[{NY}:{NY+1}], v{NY+2} offset:{L_ZS}''')
        D = RB
        for rho in range(2):
            for t in range(2):
                for o in range(2):
                    mfma(p, D + 16 * rho + 8 * t + 4 * o, A + 4 * rho + 2 * t, aRI2 + 2 * o, None, 'v', 'a', k16=True)
        for rho in range(2):
            p(f'v_cvt_f32_f16_sdwa v{CI+4*rho}, v{NY+rho} dst_sel:DWORD dst_unused:UNUSED_PAD src0_sel:WORD_1')
        for rho in range(2): p(f'v_mul_f32 v{CI+4*rho}, v{CI+4*rho}, v{vSGN}')
        for rho in range(2):
            for k in range(1, 4): p(f'v_mov_b32 v{CI+4*rho+k}, v{CI+4*rho}')
        B = RC
        for rho in range(2):
            items = [(B + 8 * rho + 4 * t + r, D + 16 * rho + 8 * t + r, D + 16 * rho + 8 * t + 4 + r, TRI + 4 * t + r) for t in range(2) for r in range(4)]
            cvt_cmul_block(p, items, RD + 12, 8)
        Y = RB
        for t in range(2):
            for rho in range(2):
                for tp in range(2):
                    d = Y + 8 * rho + 4 * tp
                    mfma(p, d, aRI1 + 8 * tp + 4 * t, B + 8 * rho + 4 * t, CI + 4 * rho if t == 0 else d, 'a', 'v')
        for k in range(16): p(f'v_add_f32 v{XR+k}, v{XR+k}, v{Y+k}')
        layernorm(p, XR, UR, RD + 12, 36)
        O = RC + 16
        for k in range(8): p(f'v_cvt_pk_f16_f32 v{O+k}, v{UR+k}, v{UR+8+k}')
        for k in range(8):
            p(f'ds_write_b32 v{vUw}, v{O+k} offset:{L_US+4096*(k//4)+256*(k%4)}')
        p('s_barrier')
        p(f'''ds_read_b128 v[{G}:{G+3}], v{vLin} offset:{L_US}
              ds_read_b128 v[{G+4}:{G+7}], v{vLin} offset:{L_US+4096}''')
        self.store_linear(G, xout)

    def phase_rf(self, xin, xout, xclr):
        p = self.p
        G = RD
        self.set_in(xin); self.gather(G)
        p(f'''ds_write_b128 v{vSt}, v[{G}:{G+3}] offset:{L_CS}
              ds_write_b128 v{vSt}, v[{G+4}:{G+7}] offset:{L_CS+6144}''')
        self.clear(xclr)
        for k in range(8):
            p(f'v_fmac_f32 v{XR+k}, v{UR+k}, v{DSK+k}')
            p(f'v_fmac_f32 v{XR+8+k}, v{UR+8+k}, v{DSK+k}')
        p('s_barrier')
        C = RA
        for k in range(8):
            p(f'ds_read_b32 v{C+k}, v{vCr} offset:{L_CS+6144*(k//4)+384*(k%4)}')
        for k in range(8):
            p(f'v_fma_mix_f32 v{XR+k}, v{C+k}, v{YSC+k}, v{XR+k} op_sel:[0,0,0] op_sel_hi:[1,0,0]')
            p(f'v_fma_mix_f32 v{XR+8+k}, v{C+k}, v{YSC+k}, v{XR+8+k} op_sel:[1,0,0] op_sel_hi:[1,0,0]')
        U = RA + 8
        layernorm(p, XR, U, RD + 12, 36)
        R = dict(A=RC, D=RB, B=RC + 8, X=RA, N=RA + 16, O=RC + 24, T=RD + 12, RF1=aRF1, RF2=aRF2, RFN=aRFN, TRF=TRF, m0=sM0)
        rfwd_dft(p, U, R, 'a')
        O = RC + 24
        for t in range(2):
            for e in range(2):
                p(f'ds_write_b64 v{vZ0}, v[{O+4*t+2*e}:{O+4*t+2*e+1}] offset:{L_XS+768*t+1536*e}')
        p('s_barrier')
        p(f'''ds_read_b128 v[{G}:{G+3}], v{vSt} offset:{L_XS}
              ds_read_b128 v[{G+4}:{G+7}], v{vSt} offset:{L_XS+6144}''')
        self.store_linear(G, xout)

    def pre_final(self):
        p = self.p
        T = RA
        for k in range(8):
            for rho in range(2):
                p(f'v_fma_f32 v{T+2*k+rho}, v{UR+8*rho+k}, v{DSK+k}, v{XR+8*rho+k}')
        a = RD + 12
        p(f'''v_and_b32 v{a}, 15, v0
              v_bfe_u32 v{a+1}, v0, 4, 2
              v_lshl_add_u32 v{a}, v{a+1}, 6, v{a}
              v_lshlrev_b32 v{a}, 5, v{a}
              s_lshl_b32 s{sT}, s{sW}, 3
              v_add_u32 v{a}, s{sT}, v{a}''')
        for k in range(8):
            p(f'ds_write_b64 v{a}, v[{T+2*k}:{T+2*k+1}] offset:{L_PRE+8192*(k//4)+512*(k%4)}')
        p(f'''v_lshrrev_b32 v{a+1}, 1, v0
              v_lshlrev_b32 v{a+1}, 6, v{a+1}
              v_and_b32 v{a+2}, 1, v0
              v_lshl_add_u32 v{a+1}, v{a+2}, 4, v{a+1}
              s_barrier''')
        for e in range(2):
            for ch in range(2):
                r = XR + 8 * e + 4 * ch
                p(f'ds_read_b128 v[{r}:{r+3}], v{a+1} offset:{L_PRE+e*8192+ch*32}')
        p(f'''v_lshrrev_b32 v{a+3}, 1, v0
              v_lshlrev_b32 v{a+3}, 3, v{a+3}
              s_mov_b32 s{sT}, {SSC:#x}
              buffer_load_dwordx2 v[{UR}:{UR+1}], v{a+3}, s[{sWS}:{sWS+3}], s{sT} offen
              buffer_load_dwordx2 v[{UR+2}:{UR+3}], v{a+3}, s[{sWS}:{sWS+3}], s{sT} offen offset:1024''')
        for k in range(4): p(f'v_mul_f32 v{UR+k}, 0x41800000, v{UR+k}')
        p(f'''v_and_b32 v{UR+4}, 1, v0
              v_lshlrev_b32 v{UR+4}, 17, v{UR+4}
              v_lshrrev_b32 v{UR+5}, 1, v0
              v_lshl_add_u32 v{UR+4}, v{UR+5}, 2, v{UR+4}''')

    def phase_final(self, xin):
        p = self.p
        G = RD
        self.set_in(xin); self.gather(G)
        O = RA
        for e in range(2):
            for ch in range(2):
                for r in range(4):
                    x = XR + 8 * e + 4 * ch + r
                    p(f'v_fma_mix_f32 v{x}, v{G+4*e+2*ch+r//2}, v{UR+2*e+ch}, v{x} op_sel:[{r%2},0,0] op_sel_hi:[1,0,0]')
        for e in range(2):
            for r in range(4):
                p(f'v_cvt_pk_bf16_f32 v{O+4*e+r}, v{XR+8*e+r}, v{XR+8*e+4+r}')
        p(f's_lshl_b32 s{sT}, s{sRB}, 10')
        for r in range(4):
            for e in range(2):
                p(f's_add_u32 s{sT+1}, s{sT}, {r*32768+e*512}')
                p(f'buffer_store_dword v{O+4*e+r}, v{UR+4}, s[{sOUT}:{sOUT+3}], s{sT+1} offen')

    def prologue(self, name):
        p = self.p
        p(f'''s_cmp_ge_u32 s2, 256
              s_cbranch_scc1 main_exit
              s_load_dwordx2 s[4:5], s[0:1], 112
              s_load_dwordx2 s[6:7], s[0:1], 96
              s_load_dwordx2 s[36:37], s[0:1], 88''')
        if self.dbg: p('s_memrealtime s[62:63]\ns_waitcnt lgkmcnt(0)\ns_mov_b32 s61, s62')
        self.stamp()
        lam_from(p, 2, sLAM, sT)
        row_base(p, sLAM, sRB, sT, sT + 1)
        T = RA
        p(f'''v_lshrrev_b32 v{T}, 6, v0
              v_readfirstlane_b32 s{sW}, v{T}
              v_and_b32 v{T+1}, 63, v0          ; lane
              v_and_b32 v{T+2}, 15, v0          ; i
              v_bfe_u32 v{T+3}, v0, 4, 2        ; g
              v_lshrrev_b32 v{T+4}, 1, v0       ; t/2
              v_and_b32 v{T+5}, 1, v0           ; t%2
              v_lshlrev_b32 v{vGA}, 13, v{T+4}
              v_lshl_add_u32 v{vGA}, v{T+5}, 4, v{vGA}
              v_lshlrev_b32 v{vLin}, 4, v0
              v_lshlrev_b32 v{vTc}, 4, v{T+1}
              s_mul_i32 s{sT}, s{sW}, {TOFF['WSTRIDE']}
              v_add_u32 v{vTw}, s{sT}, v{vTc}
              s_mov_b32 s{sBUD}, {POLL_BUDGET}
              s_mov_b64 s[{sM0}:{sM0+1}], 1
              s_waitcnt lgkmcnt(0)''')
        srd(p, sWS, 4, WS_BYTES)
        table_srd(p, sTB, 'main_pc')
        self.set_in(1); self.gather(RD, poll=False)
        load_table(p, 'F64', 8, aF64, 'a', vTw, sTB, sT)
        load_table(p, 'TA', 2, TA_, 'v', vTw, sTB, sT)
        load_table(p, 'F32C', 8, aF32, 'a', vTc, sTB, sT)
        p(f'''s_lshl_b32 s{sT}, s{sLAM}, 13
              s_add_u32 s{sT}, s{sT}, {WT:#x}
              s_lshl_b32 s{sT+1}, s{sW}, 11
              s_add_u32 s{sT}, s{sT}, s{sT+1}
              buffer_load_dwordx4 v[{WW}:{WW+3}], v{vTc}, s[{sWS}:{sWS+3}], s{sT} offen
              buffer_load_dwordx4 v[{WW+4}:{WW+7}], v{vTc}, s[{sWS}:{sWS+3}], s{sT} offen offset:1024
              s_add_u32 s{sT+1}, s{sT+1}, {WQ:#x}
              buffer_load_dwordx4 v[{WQr}:{WQr+3}], v{vTc}, s[{sWS}:{sWS+3}], s{sT+1} offen
              buffer_load_dwordx4 v[{WQr+4}:{WQr+7}], v{vTc}, s[{sWS}:{sWS+3}], s{sT+1} offen offset:1024''')
        srd(p, sOUT, 6, 0x200000)
        srd(p, sDS, 36, 1024)
        p(f'''v_mul_u32_u24 v{vSt}, 48, v{T+4}
              v_lshl_add_u32 v{vSt}, v{T+5}, 4, v{vSt}
              v_lshlrev_b32 v{vCO}, 6, v{T+2}
              v_lshl_add_u32 v{vCO}, v{T+3}, 4, v{vCO}
              s_lshl_b32 s{sT}, s{sW}, 11
              v_add_u32 v{vCO}, s{sT}, v{vCO}
              v_mul_u32_u24 v{vLAr}, 272, v{T+2}
              v_lshl_add_u32 v{vLAr}, v{T+3}, 4, v{vLAr}
              v_mul_u32_u24 v{vLBr}, 144, v{T+2}
              v_lshl_add_u32 v{vLBr}, v{T+3}, 4, v{vLBr}
              v_mul_u32_u24 v{vMw}, {4*272}, v{T+3}
              v_lshl_add_u32 v{vMw}, v{T+2}, 2, v{vMw}
              s_lshl_b32 s{sT}, s{sW}, 6
              v_add_u32 v{vMw}, s{sT}, v{vMw}''')
        p(f'''v_and_b32 v{T+6}, 63, v{T+4}
              v_lshrrev_b32 v{T+6}, 1, v{T+6}        ; n2
              v_lshrrev_b32 v{T+7}, 6, v{T+4}
              v_lshlrev_b32 v{T+7}, 1, v{T+7}
              v_and_b32 v{T+8}, 1, v{T+4}
              v_add_u32 v{T+7}, v{T+7}, v{T+8}       ; a
              v_mul_u32_u24 v{vLAw}, 272, v{T+6}
              v_lshl_add_u32 v{vLAw}, v{T+7}, 5, v{vLAw}
              v_lshl_add_u32 v{vLAw}, v{T+5}, 4, v{vLAw}
              v_mul_u32_u24 v{vLBw}, 144, v{T+6}
              v_lshl_add_u32 v{vLBw}, v{T+7}, 4, v{vLBw}
              v_mul_u32_u24 v{T+8}, 4608, v{T+5}
              v_add_u32 v{vLBw}, v{vLBw}, v{T+8}''')
        p(f'''v_lshl_add_u32 v{T+6}, v{T+3}, 6, v{T+2}   ; i + 64 g
              v_mul_u32_u24 v{vZ0}, 48, v{T+6}
              s_lshl_b32 s{sT}, s{sW}, 3
              v_add_u32 v{vZ0}, s{sT}, v{vZ0}
              v_add_u32 v{vZ1}, 4, v{vZ0}
              v_lshlrev_b32 v{vUw}, 4, v{T+6}
              s_lshl_b32 s{sT}, s{sW}, 2
              v_add_u32 v{vUw}, s{sT}, v{vUw}
              v_lshrrev_b32 v{T+7}, 1, v{T+2}
              v_lshl_add_u32 v{T+7}, v{T+3}, 5, v{T+7}   ; 32 g + i/2
              v_mul_u32_u24 v{vCr}, 48, v{T+7}
              v_and_b32 v{T+8}, 1, v{T+2}
              v_lshl_add_u32 v{vCr}, v{T+8}, 3, v{vCr}
              s_lshr_b32 s{sT}, s{sW}, 1
              s_lshl_b32 s{sT}, s{sT}, 4
              s_and_b32 s{sT+1}, s{sW}, 1
              s_lshl_b32 s{sT+1}, s{sT+1}, 2
              s_add_u32 s{sT}, s{sT}, s{sT+1}
              v_add_u32 v{vCr}, s{sT}, v{vCr}
              v_lshlrev_b32 v{T+8}, 31, v{T+8}
              v_xor_b32 v{vSGN}, 0x3b800000, v{T+8}
              v_mov_b32 v{SENT}, -1
              v_mov_b32 v{SENT+1}, -1
              v_mov_b32 v{SENT+2}, -1
              v_mov_b32 v{SENT+3}, -1''')

    def prefetch_after_ca0(self):
        p = self.p
        load_table(p, 'RI2', 1, aRI2, 'a', vTc, sTB, sT)
        load_table(p, 'RI1', 4, aRI1, 'a', vTc, sTB, sT)
        load_table(p, 'TRI', 2, TRI, 'v', vTc, sTB, sT)
        p(f'''s_lshl_b32 s{sT}, s{sLAM}, 13
              s_lshl_b32 s{sT+1}, s{sW}, 11
              s_add_u32 s{sT}, s{sT}, s{sT+1}
              s_add_u32 s{sT}, s{sT}, {X0L:#x}
              buffer_load_dwordx4 v[{UR}:{UR+3}], v{vTc}, s[{sWS}:{sWS+3}], s{sT} offen
              buffer_load_dwordx4 v[{UR+4}:{UR+7}], v{vTc}, s[{sWS}:{sWS+3}], s{sT} offen offset:1024''')
        load_table(p, 'GF', 4, aGF, 'a', vTw, sTB, sT)
        load_table(p, 'TB', 2, TB_, 'v', vTw, sTB, sT)
        self.set_own(sT, sT + 1, KN)
        p(f'''buffer_load_dwordx4 v[{KF}:{KF+3}], v{vLin}, s[{sWS}:{sWS+3}], s{sT} offen
              buffer_load_dwordx4 v[{KF+4}:{KF+7}], v{vLin}, s[{sWS}:{sWS+3}], s{sT+1} offen''')
        for k in range(8):
            p(f'v_lshlrev_b32 v{XR+k}, 16, v{UR+k}')
            p(f'v_and_b32 v{XR+8+k}, 0xffff0000, v{UR+k}')

    def after_ri0(self):
        p = self.p
        load_table(p, 'GI', 4, aGI, 'a', vTw, sTB, sT)
        load_table(p, 'RF1', 4, aRF1, 'a', vTc, sTB, sT)
        load_table(p, 'RF2', 1, aRF2, 'a', vTc, sTB, sT)
        load_table(p, 'RFN', 1, aRFN, 'a', vTc, sTB, sT)
        load_table(p, 'TRF', 2, TRF, 'v', vTc, sTB, sT)
        a = RD + 12
        p(f'''v_and_b32 v{a}, 15, v0
              v_bfe_u32 v{a+1}, v0, 4, 2
              v_lshl_add_u32 v{a}, v{a+1}, 6, v{a}
              v_lshlrev_b32 v{a+1}, 1, v{a}
              v_lshlrev_b32 v{a+2}, 2, v{a}
              s_mov_b32 s{sT}, {SSC:#x}''')
        for k in range(8):
            dd = 256 * (k // 4) + 16 * (k % 4)
            p(f'buffer_load_ushort v{DSK+k}, v{a+1}, s[{sDS}:{sDS+3}], 0 offen offset:{dd*2}')
            p(f'buffer_load_dword v{YSC+k}, v{a+2}, s[{sWS}:{sWS+3}], s{sT} offen offset:{dd*4}')
        p(f'''v_lshrrev_b32 v{a}, 3, v0
              v_mul_u32_u24 v{a}, 144, v{a}
              v_and_b32 v{a+1}, 7, v0
              v_lshl_add_u32 v{a}, v{a+1}, 4, v{a}
              ds_write_b128 v{a}, v[{KF}:{KF+3}] offset:{L_KST}
              ds_write_b128 v{a}, v[{KF+4}:{KF+7}] offset:{L_KST+4608}
              s_barrier''')
        self.cb_forward(L_KST, KF)
        for k in range(8):
            p(f'v_lshlrev_b32 v{DSK+k}, 16, v{DSK+k}')
            p(f'v_mul_f32 v{YSC+k}, 0x41800000, v{YSC+k}')

    def build(self, name):
        p = self.p
        self.prologue(name)
        phases = [
            lambda: (self.phase_ca(0, 1, 2, 3, True), self.stamp(), self.prefetch_after_ca0()),
            lambda: (self.phase_ri(0, 2, 3, 4), self.after_ri0()),
            lambda: self.phase_cb(0, 3, 4, 5),
            lambda: self.phase_rf(4, 5, 6),
            lambda: self.phase_ca(1, 5, 6, 7, False),
            lambda: (self.phase_ri(1, 6, 7, 8), self.pre_final()),
            lambda: self.phase_cb(1, 7, 8, None),
            lambda: self.phase_final(8),
        ]
        for i, ph in enumerate(phases):
            ph()
            if i < 7: self.stamp()
            if self.stop_after is not None and i + 2 == self.stop_after: break
        self.dump_stamps()
        p('s_endpgm')
        p.label('main_exit')
        p('s_endpgm')
        return p
```

```python
from common import *

PREP_LDS = 36864
PREP_GRID = 648

def lam_from(p, sid, dst, tmp):
    p(f'''s_and_b32 s{dst}, s{sid}, 7
          s_lshl_b32 s{dst}, s{dst}, 5
          s_lshr_b32 s{tmp}, s{sid}, 3
          s_add_u32 s{dst}, s{dst}, s{tmp}''')

def row_base(p, lam, dst, t0, t1):
    p(f'''s_lshr_b32 s{t0}, s{lam}, 6
          s_lshl_b32 s{t0}, s{t0}, 1
          s_and_b32 s{t1}, s{lam}, 1
          s_add_u32 s{t0}, s{t0}, s{t1}
          s_lshl_b32 s{t0}, s{t0}, 8
          s_and_b32 s{t1}, s{lam}, 63
          s_lshr_b32 s{t1}, s{t1}, 1
          s_add_u32 s{dst}, s{t0}, s{t1}''')

def role_r1(p):
    p.label('prep_r1')
    p('''s_load_dwordx2 s[4:5], s[0:1], 0
         s_load_dwordx2 s[6:7], s[0:1], 112
         s_sub_u32 s24, s2, 256''')
    lam_from(p, 24, 25, 26)
    row_base(p, 25, 27, 26, 28)
    p('''v_and_b32 v1, 63, v0
         v_lshrrev_b32 v2, 6, v0
         v_readfirstlane_b32 s29, v2
         v_lshlrev_b32 v3, 4, v1
         s_waitcnt lgkmcnt(0)''')
    srd(p, 8, 4, 0x200000)
    srd(p, 12, 6, WS_BYTES)
    table_srd(p, 16, 'prep_r1_pc')
    p('''s_lshl_b32 s30, s29, 6
         s_add_u32 s30, s30, s27
         s_lshl_b32 s30, s30, 10
         s_add_u32 s31, s30, 0x8000
         buffer_load_dwordx4 v[8:11], v3, s[8:11], s30 offen
         buffer_load_dwordx4 v[12:15], v3, s[8:11], s31 offen''')
    RF1, RF2, RFN, TRF = 64, 80, 84, 88
    load_table(p, 'RF1', 4, RF1, 'v', 3, 16, 32)
    load_table(p, 'RF2', 1, RF2, 'v', 3, 16, 32)
    load_table(p, 'RFN', 1, RFN, 'v', 3, 16, 32)
    load_table(p, 'TRF', 2, TRF, 'v', 3, 16, 32)
    p(f'''v_lshlrev_b32 v4, 4, v0
          v_mov_b32 v96, -1
          v_mov_b32 v97, -1
          v_mov_b32 v98, -1
          v_mov_b32 v99, -1
          s_lshl_b32 s33, s25, 13
          s_add_u32 s34, s33, {E(2):#x}
          s_add_u32 s35, s34, 0x1000
          buffer_store_dwordx4 v[96:99], v4, s[12:15], s34 offen
          buffer_store_dwordx4 v[96:99], v4, s[12:15], s35 offen''')
    p('''s_lshl_b32 s36, s29, 11
         s_add_u32 s36, s36, 0x4000
         v_add_u32 v5, s36, v3
         v_lshlrev_b32 v6, 3, v1
         v_add_u32 v6, s36, v6
         ds_write_b128 v5, v[8:11]
         ds_write_b128 v5, v[12:15] offset:1024''')
    for rho in range(2):
        for t in range(2):
            p(f'ds_read_b64_tr_b16 v[{16+4*rho+2*t}:{17+4*rho+2*t}], v6 offset:{1024*rho+512*t}')
    X = 24
    for rho in range(2):
        for k in range(4):
            src = 16 + 4 * rho + k
            p(f'v_lshlrev_b32 v{X+8*rho+2*k}, 16, v{src}')
            p(f'v_and_b32 v{X+8*rho+2*k+1}, 0xffff0000, v{src}')
    p('s_mov_b32 s37, 0x07060302')
    for k in range(8): p(f'v_perm_b32 v{8+k}, v{X+8+k}, v{X+k}, s37')
    p(f'''s_lshl_b32 s38, s25, 13
          s_lshl_b32 s39, s29, 11
          s_add_u32 s38, s38, s39
          s_add_u32 s38, s38, {X0L:#x}
          buffer_store_dwordx4 v[8:11], v3, s[12:15], s38 offen
          buffer_store_dwordx4 v[12:15], v3, s[12:15], s38 offen offset:1024''')
    U = 40
    layernorm(p, X, U, 16, 40)
    p('s_mov_b64 s[42:43], 1')
    R = dict(A=16, D=96, B=24, X=40, N=56, O=8, T=16, RF1=RF1, RF2=RF2, RFN=RFN, TRF=TRF, m0=42)
    R['D'] = 92 + 4
    rfwd_dft(p, U, R, 'v')
    p('''v_and_b32 v2, 15, v1
         v_lshrrev_b32 v3, 4, v1
         v_lshl_add_u32 v2, v3, 6, v2
         v_mul_u32_u24 v2, 48, v2
         s_lshl_b32 s44, s29, 3
         v_add_u32 v2, s44, v2''')
    for t in range(2):
        for e in range(2):
            p(f'ds_write_b64 v2, v[{8+4*t+2*e}:{9+4*t+2*e}] offset:{768*t+1536*e}')
    p('''v_lshrrev_b32 v2, 1, v0
         v_mul_u32_u24 v2, 48, v2
         v_and_b32 v3, 1, v0
         v_lshl_add_u32 v2, v3, 4, v2
         s_barrier
         ds_read_b128 v[16:19], v2
         ds_read_b128 v[20:23], v2 offset:6144''')
    p(f'''s_add_u32 s34, s33, {E(1):#x}
          s_add_u32 s35, s34, 0x1000
          buffer_store_dwordx4 v[16:19], v4, s[12:15], s34 offen
          buffer_store_dwordx4 v[20:23], v4, s[12:15], s35 offen''')
    rt_end(p, 12, 'r1')
    p('s_endpgm')

def wave_allreduce2(p, A, B, T):
    p(f'''v_permlane32_swap_b32 v{A}, v{B}
          v_add_f32 v{A}, v{A}, v{B}
          v_mov_b32 v{T}, v{A}
          v_permlane16_swap_b32 v{A}, v{T}
          v_add_f32 v{A}, v{A}, v{T}
          v_add_f32 v{A}, v{A}, v{A} row_ror:8
          v_add_f32 v{A}, v{A}, v{A} row_ror:4
          v_add_f32 v{A}, v{A}, v{A} row_ror:2
          v_add_f32 v{A}, v{A}, v{A} row_ror:1
          v_mov_b32 v{B}, v{A}
          v_permlane32_swap_b32 v{A}, v{B}''')

def role_k(p):
    p.label('prep_k')
    p('''s_load_dwordx4 s[4:7], s[0:1], 32
         s_load_dwordx4 s[8:11], s[0:1], 48
         s_load_dwordx4 s[12:15], s[0:1], 64
         s_load_dwordx2 s[16:17], s[0:1], 80
         s_load_dwordx2 s[18:19], s[0:1], 112
         v_and_b32 v1, 63, v0
         v_lshrrev_b32 v2, 6, v0
         v_readfirstlane_b32 s29, v2
         s_waitcnt lgkmcnt(0)''')
    p('s_mov_b32 s60, s29')
    for dst, src in ((20, 4), (24, 6), (28, 8), (32, 10), (36, 12), (40, 14)): srd(p, dst, src, 0x20000)
    srd(p, 44, 16, 1024)
    srd(p, 48, 18, WS_BYTES)
    p('''s_lshr_b32 s61, s60, 1
         s_lshl_b32 s62, s2, 1
         s_add_u32 s62, s62, s61
         s_and_b32 s63, s60, 1
         s_lshl_b32 s63, s63, 6
         s_lshl_b32 s64, s62, 7
         s_add_u32 s64, s64, s63
         s_lshl_b32 s64, s64, 1
         v_lshlrev_b32 v3, 1, v1
         s_lshl_b32 s65, s62, 1
         v_mov_b32 v4, 0''')
    for i, sr in enumerate((20, 24, 28, 32, 36, 40)):
        p(f'buffer_load_ushort v{8+i}, v3, s[{sr}:{sr+3}], s64 offen')
    p('buffer_load_ushort v14, v4, s[44:47], s65 offen')
    for i in range(7): p(f'v_lshlrev_b32 v{8+i}, 16, v{8+i}')
    AR, AI, BR, BI, CR, CI, DT = 8, 9, 10, 11, 12, 13, 14
    p(f'''s_mov_b32 s66, 0x3fb8aa3b
          s_mov_b32 s67, 0x3e22f983
          v_mul_f32 v{DT}, s66, v{DT}
          v_exp_f32 v{DT}, v{DT}''')
    rbf(p, DT)
    p(f'''v_mul_f32 v{AR}, v{DT}, v{AR}
          v_mul_f32 v{AI}, v{DT}, v{AI}
          v_mul_f32 v{BR}, v{DT}, v{BR}
          v_mul_f32 v{BI}, v{DT}, v{BI}
          v_mul_f32 v16, v{CR}, v{BR}
          v_mul_f32 v17, v{CR}, v{BI}
          v_fma_f32 v16, -v{CI}, v{BI}, v16
          v_fma_f32 v17, v{CI}, v{BR}, v17
          v_and_b32 v18, 0x7fffffff, v16
          v_and_b32 v19, 0x7fffffff, v17
          v_add_f32 v18, v18, v19
          v_mov_b32 v19, v16''')
    wave_allreduce2(p, 18, 19, 20)
    p(f'''s_mov_b32 s68, 0x0da24260
          v_max_f32 v18, s68, v18
          v_rcp_f32 v20, v18
          v_mul_f32 v16, v16, v20
          v_mul_f32 v17, v17, v20
          v_mul_f32 v19, v19, v20''')
    p(f'''v_mul_f32 v21, s66, v{AR}
          v_mul_f32 v26, s67, v{AI}
          v_exp_f32 v27, v21
          v_fract_f32 v28, v26
          v_cos_f32 v22, v28
          v_sin_f32 v23, v28
          v_mul_f32 v22, v27, v22
          v_mul_f32 v23, v27, v23
          v_mul_f32 v21, 0x42000000, v21
          v_mul_f32 v26, 0x42000000, v26
          v_exp_f32 v27, v21
          v_fract_f32 v28, v26
          v_cos_f32 v24, v28
          v_sin_f32 v25, v28
          v_mul_f32 v24, v27, v24
          v_mul_f32 v25, v27, v25''')
    WSTR = 8704
    p(f'''s_mul_i32 s69, s60, {WSTR}
          v_lshlrev_b32 v5, 2, v1
          v_add_u32 v5, s69, v5
          v_and_b32 v6, 15, v1
          v_lshrrev_b32 v7, 4, v1
          v_mul_u32_u24 v30, 272, v6
          v_lshl_add_u32 v30, v7, 4, v30
          v_add_u32 v30, s69, v30''')
    def cstep(cur, w, tmp):
        p(f'v_pk_mul_f32 v[{tmp}:{tmp+1}], v[{cur}:{cur+1}], v[{w}:{w+1}] op_sel:[0,0] op_sel_hi:[0,1]')
        p(f'v_pk_fma_f32 v[{cur}:{cur+1}], v[{cur}:{cur+1}], v[{w}:{w+1}], v[{tmp}:{tmp+1}] op_sel:[1,1,0] op_sel_hi:[1,0,1] neg_lo:[1,0,0]')
    p('v_mov_b32 v32, v22\nv_mov_b32 v33, v23')
    for lo in range(32):
        p(f'v_cvt_pk_f16_f32 v{36+lo%4}, v32, -v33')
        p(f'ds_write_b32 v5, v{36+lo%4} offset:{lo*272}')
        if lo < 31: cstep(32, 22, 34)
    QB = 64
    for t in range(2):
        for ks in range(4):
            p(f'ds_read_b128 v[{QB+16*t+4*ks}:{QB+16*t+4*ks+3}], v30 offset:{t*4352+ks*64}')
    DD = 96 - 0
    PA = 40
    p('v_mov_b32 v32, v16\nv_mov_b32 v33, v17')
    for chunk in range(2):
        for hh in range(32):
            p(f'v_cvt_pk_f16_f32 v{36+hh%4}, v32, v33')
            p(f'ds_write_b32 v5, v{36+hh%4} offset:{hh*272}')
            if not (chunk == 1 and hh == 31): cstep(32, 24, 34)
        for m in range(2):
            mt = 2 * chunk + m
            for ks in range(4):
                p(f'ds_read_b128 v[{PA+4*ks}:{PA+4*ks+3}], v30 offset:{m*4352+ks*64}')
            for ks in range(4):
                for t in range(2):
                    d = DD + 8 * mt + 4 * t
                    mfma(p, d, PA + 4 * ks, QB + 16 * t + 4 * ks, None if ks == 0 else d)
    p(f'''v_lshl_add_u32 v6, v7, 7, v6
          v_add_u32 v6, 1, v6
          v_lshlrev_b32 v6, 2, v6
          v_add_u32 v6, s69, v6''')
    for mt in range(4):
        for t in range(2):
            for r in range(4):
                p(f'ds_write_b32 v6, v{DD+8*mt+4*t+r} offset:{(512*mt+32*r+16*t)*4}')
    p(f'''v_mov_b32 v7, s69
          ds_write_b32 v7, v19
          ds_write_b32 v7, v18 offset:8200
          s_barrier''')
    p('''v_lshrrev_b32 v2, 3, v0
         v_and_b32 v3, 7, v0
         v_lshl_add_u32 v2, v3, 8, v2
         v_mov_b32 v4, 0''')
    p(f'''ds_read_b32 v40, v4 offset:8200
          ds_read_b32 v41, v4 offset:{WSTR+8200}
          ds_read_b32 v42, v4 offset:{2*WSTR+8200}
          ds_read_b32 v43, v4 offset:{3*WSTR+8200}''')
    for jj in range(8):
        p(f'v_add_u32 v{8+jj}, {32*jj}, v2')
        p(f'v_cvt_f32_u32 v{8+jj}, v{8+jj}')
    for q in range(4): p(f'v_cvt_pk_bf16_f32 v{16+q}, v{8+2*q}, v{9+2*q}')
    for q in range(4):
        p(f'v_lshlrev_b32 v{8+2*q}, 16, v{16+q}')
        p(f'v_and_b32 v{9+2*q}, 0xffff0000, v{16+q}')
    for jj in range(8): p(f'v_cvt_u32_f32 v{8+jj}, v{8+jj}')
    for jj in range(8): p(f'v_lshlrev_b32 v{8+jj}, 2, v{8+jj}')
    for wv in range(4):
        for jj in range(8):
            p(f'ds_read_b32 v{64+8*wv+jj}, v{8+jj} offset:{wv*WSTR}')
    p('''v_add_f32 v44, v40, v41
         v_add_f32 v45, v42, v43
         v_rcp_f32 v46, v44
         v_rcp_f32 v47, v45
         v_mul_f32 v40, v40, v46
         v_mul_f32 v41, v41, v46
         v_mul_f32 v42, v42, v47
         v_mul_f32 v43, v43, v47''')
    for ch in range(2):
        for jj in range(8):
            a, b = 64 + 16 * ch + jj, 64 + 16 * ch + 8 + jj
            p(f'v_mul_f32 v{a}, v{a}, v{40+2*ch}')
            p(f'v_fmac_f32 v{a}, v{b}, v{41+2*ch}')
        for q in range(4):
            p(f'v_cvt_pk_f16_f32 v{48+4*ch+q}, v{64+16*ch+2*q}, v{64+16*ch+2*q+1}')
    p(f'''v_lshlrev_b32 v4, 4, v0
          s_lshl_b32 s70, s2, 13
          s_add_u32 s70, s70, {KN:#x}
          s_add_u32 s71, s70, 0x1000
          buffer_store_dwordx4 v[48:51], v4, s[48:51], s70 offen
          buffer_store_dwordx4 v[52:55], v4, s[48:51], s71 offen
          s_lshl_b32 s72, s2, 3
          s_add_u32 s72, s72, {SSC:#x}
          v_mov_b32 v2, 0
          v_cmp_eq_u32 vcc, 0, v0
          s_and_saveexec_b64 s[74:75], vcc
          s_cbranch_execz prep_k_end
          buffer_store_dwordx2 v[44:45], v2, s[48:51], s72 offen''')
    p.label('prep_k_end')
    rt_end(p, 48, 'k')
    p('s_endpgm')

def role_w(p):
    p.label('prep_w')
    p('''s_load_dwordx4 s[4:7], s[0:1], 8
         s_load_dwordx2 s[8:9], s[0:1], 112
         s_sub_u32 s24, s2, 512
         s_waitcnt lgkmcnt(0)''')
    WB = 2048 * 257 * 2
    srd(p, 12, 4, WB); srd(p, 16, 6, WB); srd(p, 20, 8, WS_BYTES)
    p('''s_cmp_ge_u32 s24, 128
         s_cbranch_scc1 prep_wsp''')
    p('''s_and_b32 s25, s24, 7
         s_lshr_b32 s26, s25, 1
         s_and_b32 s27, s25, 1
         s_lshr_b32 s28, s24, 3
         v_and_b32 v1, 15, v0
         v_lshrrev_b32 v2, 4, v0
         s_lshl_b32 s29, s26, 4
         s_lshl_b32 s30, s27, 10
         s_add_u32 s29, s29, s30
         v_add_u32 v3, s29, v2
         v_mul_u32_u24 v3, 514, v3
         s_lshl_b32 s31, s28, 4
         v_add_u32 v4, s31, v1
         v_lshl_add_u32 v3, v4, 1, v3''')
    for m in range(16):
        p(f's_mov_b32 s32, {m*64*514}')
        p(f'buffer_load_ushort v{8+m}, v3, s[12:15], s32 offen')
        p(f'buffer_load_ushort v{24+m}, v3, s[16:19], s32 offen')
    p('s_mov_b32 s33, 0x42000000')
    for m in range(16):
        p(f'v_lshlrev_b32 v{8+m}, 16, v{8+m}')
        p(f'v_lshlrev_b32 v{24+m}, 16, v{24+m}')
        p(f'v_mul_f32 v{8+m}, s33, v{8+m}')
        p(f'v_mul_f32 v{24+m}, s33, v{24+m}')
        p(f'v_cvt_pk_f16_f32 v{40+m}, v{8+m}, v{24+m}')
    p(f'''v_lshlrev_b32 v5, 13, v4
          v_lshl_add_u32 v5, v2, 4, v5
          s_lshl_b32 s34, s26, 11
          s_lshl_b32 s35, s27, 10
          s_add_u32 s34, s34, s35
          s_add_u32 s34, s34, {WT:#x}
          v_cmp_ne_u32 vcc, 0, v4
          s_and_saveexec_b64 s[36:37], vcc
          s_cbranch_execz prep_w_end''')
    for gp in range(4):
        p(f'buffer_store_dwordx4 v[{40+4*gp}:{43+4*gp}], v5, s[20:23], s34 offen offset:{gp*256}')
    p.label('prep_w_end')
    rt_end(p, 20, 'w')
    p('s_endpgm')
    p.label('prep_wsp')
    p('''s_sub_u32 s25, s24, 128
         s_lshr_b32 s26, s25, 1
         s_and_b32 s27, s25, 1
         v_and_b32 v1, 15, v0
         v_lshrrev_b32 v2, 4, v0
         s_lshl_b32 s29, s26, 4
         s_lshl_b32 s30, s27, 10
         s_add_u32 s29, s29, s30
         v_lshl_add_u32 v3, v2, 6, v1
         v_add_u32 v3, s29, v3
         v_sub_u32 v4, 0x800, v3
         v_and_b32 v4, 0x7ff, v4
         v_mul_u32_u24 v3, 514, v3
         v_mul_u32_u24 v4, 514, v4
         buffer_load_ushort v8, v3, s[12:15], 0 offen
         buffer_load_ushort v9, v3, s[16:19], 0 offen
         buffer_load_ushort v10, v3, s[12:15], 0 offen offset:512
         buffer_load_ushort v11, v3, s[16:19], 0 offen offset:512
         buffer_load_ushort v12, v4, s[12:15], 0 offen
         buffer_load_ushort v13, v4, s[16:19], 0 offen
         buffer_load_ushort v14, v4, s[12:15], 0 offen offset:512
         buffer_load_ushort v15, v4, s[16:19], 0 offen offset:512''')
    for i in range(8): p(f'v_lshlrev_b32 v{8+i}, 16, v{8+i}')
    p('''v_add_f32 v16, v8, v12
         v_sub_f32 v17, v9, v13
         v_add_f32 v18, v10, v14
         v_sub_f32 v19, v11, v15
         v_add_f32 v20, v16, v18
         v_add_f32 v21, v17, v19
         v_sub_f32 v22, v16, v18
         v_sub_f32 v23, v17, v19
         v_mul_f32 v20, 4.0, v20
         v_mul_f32 v21, 4.0, v21
         v_mul_f32 v22, 4.0, v22
         v_mul_f32 v23, 4.0, v23
         v_cvt_pk_f16_f32 v24, v20, v21
         v_cvt_pk_f16_f32 v25, v22, v23''')
    p(f'''v_lshrrev_b32 v5, 2, v2
          v_lshl_add_u32 v5, v5, 4, v1
          v_lshlrev_b32 v5, 4, v5
          v_and_b32 v6, 3, v2
          v_lshl_add_u32 v5, v6, 2, v5
          s_lshl_b32 s34, s26, 11
          s_lshl_b32 s35, s27, 10
          s_add_u32 s34, s34, s35
          s_add_u32 s36, s34, {WT:#x}
          s_add_u32 s37, s34, {WQ:#x}
          buffer_store_dword v24, v5, s[20:23], s36 offen
          buffer_store_dword v25, v5, s[20:23], s37 offen
          s_endpgm''')

DBG = False
def rt_begin(p):
    if DBG: p('s_memrealtime s[90:91]\ns_waitcnt lgkmcnt(0)\ns_mov_b32 s92, s90')
def rt_end(p, ws, tag):
    if not DBG: return
    p(f'''s_waitcnt vmcnt(0)
          s_memrealtime s[90:91]
          s_waitcnt lgkmcnt(0)
          s_mov_b64 exec, 1
          v_mov_b32 v2, s92
          v_mov_b32 v3, s90
          s_lshl_b32 s93, s2, 3
          s_add_u32 s93, s93, 0x1790000
          v_mov_b32 v4, 0
          buffer_store_dwordx2 v[2:3], v4, s[{ws}:{ws+3}], s93 offen''')

def gen_prep(name):
    p = Prog()
    rt_begin(p)
    p(f'''s_cmp_ge_u32 s2, {PREP_GRID}
          s_cbranch_scc1 prep_exit
          s_cmp_ge_u32 s2, 512
          s_cbranch_scc1 prep_w
          s_cmp_ge_u32 s2, 256
          s_cbranch_scc1 prep_r1''')
    role_k(p)
    role_r1(p)
    role_w(p)
    p.label('prep_exit')
    p('s_endpgm')
    return p
```
